```python
import torch

def _softmax(x, axis=-1):
    return torch.softmax(x, dim=axis)
def _gelu(x):
    return torch.nn.functional.gelu(x, approximate="tanh")
def _silu(x):
    return torch.nn.functional.silu(x)
def _sigmoid(x):
    return torch.sigmoid(x)
def _layernorm(x, axis=-1, eps=1e-5):
    m = x.mean(dim=axis, keepdim=True)
    v = x.var(dim=axis, keepdim=True, unbiased=False)
    return (x - m) / torch.sqrt(v + eps)
def _scatter_add(tgt, idx, src, axis=0):
    return tgt.clone().index_add_(axis, idx, src)
def _segment_sum(src, seg, n):
    out = torch.zeros((n,) + src.shape[1:], dtype=src.dtype)
    return out.index_add_(0, seg, src)
def _pad(x, pw):
    flat = tuple(v for pair in reversed(pw) for v in pair)
    return torch.nn.functional.pad(x, flat)

kernel_name = 'sequential_preLN__sliding_block_cached__mixer_channel_mlp__decode'

def setup_inputs():

    _w = (lambda a: (lambda t: t.to(torch.bfloat16) if t.is_floating_point() else t)(torch.as_tensor(a)))
    def _A_setup():
        B, Sq, D = 4, 1, 448
        Hq, Hkv, Sk, Dh = 16, 8, 4096, 256
        assert Hq % Hkv == 0, (Hq, Hkv)
        return {
            "x": _w((lambda *s: torch.randn(*s, dtype=torch.bfloat16) * 0.05)(B, Sq, D)),
            "k_cache": _w((lambda *s: torch.randn(*s, dtype=torch.bfloat16) * 3.2)(B, Hkv, Sk, Dh)),
            "v_cache": _w((lambda *s: torch.randn(*s, dtype=torch.bfloat16) * 0.4)(B, Hkv, Sk, Dh)),
            "wq": _w((lambda *s: torch.randn(*s, dtype=torch.bfloat16) * 3.2)(D, Hq * Dh) * (D ** -0.5)),
            "wo": _w((lambda *s: torch.randn(*s, dtype=torch.bfloat16) * 0.4)(Hq * Dh, D) * ((Hq * Dh) ** -0.5)),
        }
    _A_in = _A_setup()

    def _B_setup():
        B, S, D, F = 4, 1, 448, 1792
        return {
            "x": _w((lambda *s: torch.randn(*s, dtype=torch.bfloat16) * 0.05)(B, S, D)),
            "w1": _w((lambda *s: torch.randn(*s, dtype=torch.bfloat16) * 3.2)(D, F) * (D ** -0.5)),
            "b1": _w((lambda *s: torch.randn(*s, dtype=torch.bfloat16) * 1.6)(F)),
            "w2": _w((lambda *s: torch.randn(*s, dtype=torch.bfloat16) * 0.1)(F, D) * (F ** -0.5)),
            "b2": _w((lambda *s: torch.randn(*s, dtype=torch.bfloat16) * 0.2)(D)),
        }
    _B_in = _B_setup()

    return {
        "A_x": _A_in["x"],
        "A_k_cache": _A_in["k_cache"],
        "A_v_cache": _A_in["v_cache"],
        "A_wq": _A_in["wq"],
        "A_wo": _A_in["wo"],
        "B_x": _B_in["x"],
        "B_w1": _B_in["w1"],
        "B_b1": _B_in["b1"],
        "B_w2": _B_in["w2"],
        "B_b2": _B_in["b2"],
    }

def reference(A_x, A_k_cache, A_v_cache, A_wq, A_wo, B_x, B_w1, B_b1, B_w2, B_b2):
    def _A_ref(x, k_cache, v_cache, wq, wo):
        B, Sq, D = x.shape
        Hq, Dh = 16, 256
        Hkv, Sk = k_cache.shape[1], k_cache.shape[2]
        W = min(4096, max(256, Sk // 4))
        rep = Hq // Hkv
        q = (lambda x, *d: x.permute(*d))((x @ wq).reshape(B, Sq, Hq, Dh), 0, 2, 1, 3)
        k = (lambda x, n, axis: torch.repeat_interleave(x, n, dim=axis))(k_cache[:, :, Sk - W:, :], rep, axis=1)
        v = (lambda x, n, axis: torch.repeat_interleave(x, n, dim=axis))(v_cache[:, :, Sk - W:, :], rep, axis=1)
        scores = torch.einsum("bhqd,bhkd->bhqk", q, k) * (Dh ** -0.5)
        p = _softmax(scores, axis=-1)
        o = torch.einsum("bhqk,bhkd->bhqd", p, v)
        return (lambda x, *d: x.permute(*d))(o, 0, 2, 1, 3).reshape(B, Sq, Hq * Dh) @ wo

    def _B_ref(x, w1, b1, w2, b2):
        y = _layernorm(x, axis=-1)
        h = _gelu(torch.einsum("bsd,df->bsf", y, w1) + b1)
        return torch.einsum("bsf,fd->bsd", h, w2) + b2

    x = A_x
    h = x + _A_ref(_layernorm(x, axis=-1), A_k_cache, A_v_cache, A_wq, A_wo)
    h2 = h + _B_ref(_layernorm(h, axis=-1), B_w1, B_b1, B_w2, B_b2)
    return h2
```

```python
NAME = "sequential_preLN__sliding_block_cached__mixer_channel_mlp__decode"
KNAME = NAME + "_kernel"

class Asm:
    def __init__(self):
        self.lines = []
    def __call__(self, s):
        for l in s.split("\n"):
            self.lines.append(l)
    def text(self):
        return "\n".join(self.lines) + "\n"

def header(launch_lines):
    s = "; generated\n"
    for l in launch_lines:
        s += l + "\n"
    s += '.amdgcn_target "amdgcn-amd-amdhsa--gfx950"\n.text\n'
    return s

def kernel_begin(name):
    return f".globl {name}\n.p2align 8\n.type {name},@function\n{name}:\n"

def descriptor(name, vgpr, sgpr=102, accum=None):
    if accum is None:
        accum = (min(vgpr,256) + 3) // 4 * 4
    return f""".section .rodata,"a"
.p2align 6
.amdhsa_kernel {name}
  .amdhsa_next_free_vgpr {vgpr}
  .amdhsa_next_free_sgpr {sgpr}
  .amdhsa_accum_offset {accum}
  .amdhsa_group_segment_fixed_size 0
  .amdhsa_kernarg_size 104
  .amdhsa_user_sgpr_count 2
  .amdhsa_user_sgpr_kernarg_segment_ptr 1
  .amdhsa_system_sgpr_workgroup_id_x 1
.end_amdhsa_kernel
.text
"""
```

```python
import re

TRANS = ("v_exp_f32","v_log_f32","v_rcp_f32","v_rsq_f32","v_sqrt_f32","v_sin_f32","v_cos_f32")

def regs(tok):
    tok = tok.strip()
    tok = tok.lstrip("-")
    m = re.fullmatch(r"abs\((.*)\)", tok)
    if m: tok = m.group(1)
    m = re.fullmatch(r"\|(.*)\|", tok)
    if m: tok = m.group(1)
    m = re.fullmatch(r"([vsa])\[(\d+):(\d+)\]", tok)
    if m: return [f"{m.group(1)}{i}" for i in range(int(m.group(2)), int(m.group(3))+1)]
    m = re.fullmatch(r"([vsa])(\d+)", tok)
    if m: return [tok]
    if tok == "vcc": return ["vcc"]
    if tok in ("vcc_lo","vcc_hi"): return ["vcc"]
    if tok in ("exec","exec_lo","exec_hi"): return ["exec"]
    if tok == "m0": return ["m0"]
    return []

class I:
    def __init__(self, text):
        self.text = text
        t = text.split(";")[0].strip()
        self.label = None; self.op = None
        self.dst = []; self.src = []; self.kind = "other"; self.states = 1
        if not t or t.startswith("."):
            self.kind = "none"; self.states = 0; return
        if t.endswith(":"):
            self.label = t[:-1]; self.kind = "none"; self.states = 0; return
        parts = t.split(None, 1)
        op = parts[0]; self.op = op
        rest = parts[1] if len(parts) > 1 else ""
        ops = []; depth = 0; cur = ""
        for ch in rest:
            if ch == "[": depth += 1
            if ch == "]": depth -= 1
            if ch == "," and depth == 0:
                ops.append(cur); cur = ""
            else: cur += ch
        ops.append(cur)
        last = ops[-1].strip().split() if ops else []
        mods = last[1:] if last else []
        if last: ops[-1] = last[0]
        self.mods = " ".join(mods)
        R = [regs(o) for o in ops]
        self.ops = ops
        base = re.sub(r"_(e32|e64|dpp|sdwa)$", "", op)
        self.base = base
        if op == "s_nop":
            self.kind = "nop"; self.states = int(ops[0], 0) + 1; return
        if op.startswith("v_mfma"):
            self.kind = "mfma"; self.dst = R[0]; self.A = R[1]; self.B = R[2]; self.C = R[3]; self.src = R[1]+R[2]+R[3]
            self.passes = 8 if "32x32" in op else 4
            return
        if op.startswith("v_"):
            self.kind = "valu"
            self.dpp = op.endswith("_dpp") or "row_" in self.mods or "quad_perm" in self.mods
            self.trans = base in TRANS
            self.permlane = base.startswith("v_permlane")
            self.lane = base in ("v_readlane_b32","v_readfirstlane_b32")
            if self.permlane:
                self.dst = R[0]+R[1]; self.src = R[0]+R[1]
            else:
                self.dst = R[0]; self.src = sum(R[1:], [])
                if base in ("v_fmac_f32","v_dot2c_f32_bf16","v_writelane_b32"): self.src += R[0]
                if base in ("v_add_co_u32","v_sub_co_u32","v_addc_co_u32","v_subb_co_u32"):
                    self.dst = R[0]+R[1]; self.src = sum(R[2:], [])
            if self.dpp: self.dppsrc = R[1]
            return
        if op.startswith("ds_"):
            self.kind = "ds"
            if op.startswith("ds_read") or "_rtn" in op or op.startswith("ds_bpermute") or op.startswith("ds_swizzle"):
                self.dst = R[0]; self.src = sum(R[1:], [])
            else:
                self.src = sum(R, [])
            return
        if op.startswith("buffer_") or op.startswith("global_"):
            self.kind = "vmem"
            self.lds = " lds" in (" " + self.mods)
            self.wide = False
            if op.startswith("buffer_load"):
                if self.lds: self.src = sum(R, []) + ["m0"]
                else: self.dst = R[0]; self.src = sum(R[1:], [])
            elif op.startswith("buffer_store") or op.startswith("buffer_atomic"):
                self.src = sum(R, []); self.data = R[0]; self.wide = len(R[0]) >= 3
            elif op.startswith("global_load"):
                self.dst = R[0]; self.src = sum(R[1:], [])
            elif op.startswith("global_store"):
                self.src = sum(R, []); self.data = R[1]; self.wide = len(R[1]) >= 3
            return
        if op.startswith("s_"):
            self.kind = "salu"
            if op.startswith("s_cbranch") or op == "s_branch":
                self.kind = "branch"; self.target = ops[0].strip(); return
            if op.startswith("s_cmp") or op in ("s_waitcnt","s_barrier","s_sleep","s_setprio","s_endpgm","s_bitcmp0_b32","s_bitcmp1_b32"):
                self.src = sum(R, []); return
            self.dst = R[0] if R else []; self.src = sum(R[1:], [])
            if "saveexec" in op: self.dst = self.dst + ["exec"]
            return

def need(p, c):
    n = 0
    S = lambda a, b: bool(set(a) & set(b))
    if p.kind == "valu":
        vd = [r for r in p.dst if r[0] in "va" and r != "vcc"]
        sd = [r for r in p.dst if r[0] == "s" or r == "vcc"]
        if c.kind == "valu":
            if c.dpp and S(vd, c.dppsrc): n = max(n, 2)
            if c.lane and S(vd, c.src): n = max(n, 1)
            if c.permlane and S(vd, c.src): n = max(n, 2)
            if S(sd, c.src): n = max(n, 2)
            if p.trans and not c.trans and S(vd, c.src): n = max(n, 1)
            if p.trans and c.trans and S(vd, c.src): n = max(n, 1)
            if p.base.startswith("v_dot"):
                if c.base == p.base:
                    if S(vd, regs(c.ops[1]) + regs(c.ops[2])): n = max(n, 3)
                elif S(vd, c.src + c.dst): n = max(n, 3)
        if c.kind == "mfma" and S(vd, c.src): n = max(n, 2)
        if c.kind == "vmem" and S(sd, c.src): n = max(n, 5)
        if p.trans and c.kind in ("ds","vmem") and S(vd, c.src): n = max(n, 1)
    if p.kind == "mfma":
        big = {4: 8, 8: 12}[p.passes]
        if c.kind == "mfma":
            if S(p.dst, c.A + c.B): n = max(n, big)
            if S(p.dst, c.C) and not (p.dst == c.C and p.op == c.op): n = max(n, {4:6, 8:10}[p.passes])
            if S(p.dst, c.dst) and not (p.dst == c.C and p.op == c.op): n = max(n, {4:6, 8:10}[p.passes])
        if c.kind == "valu":
            if S(p.dst, c.src + c.dst): n = max(n, big)
            if S(p.C, c.dst): n = max(n, {4:3, 8:7}[p.passes])
        if c.kind in ("ds","vmem") and S(p.dst, c.src + c.dst): n = max(n, big)
    if p.kind == "salu" and "m0" in p.dst and c.kind == "vmem" and getattr(c, "lds", False): n = max(n, 1)
    if p.kind == "vmem" and getattr(p, "wide", False):
        if c.kind == "valu" and S(p.data, c.dst): n = max(n, 2)
        elif c.kind in ("ds","vmem","mfma") and S(p.data, c.dst): n = max(n, 2)
    if p.kind == "ds" and p.op in ("ds_write_b128","ds_write_b96") and c.kind == "valu" and S(p.src[1:], c.dst): n = max(n, 2)
    return n

WIN = 14
def fix(lines):
    ins = [I(l) for l in lines]
    out = []
    for c in ins:
        if c.kind not in ("none",):
            dist = 0; req = 0
            for p in reversed(out):
                if p.kind == "branch" and p.op == "s_branch": break
                if p.op in ("s_endpgm", "s_setpc_b64"): break
                if p.kind != "none":
                    r = need(p, c) - dist
                    req = max(req, r)
                    dist += p.states
                    if dist >= WIN: break
            while req > 0:
                k = min(req, 16)
                out.append(I(f"s_nop {k-1}")); req -= k
        out.append(c)
    lab = {x.label: i for i, x in enumerate(out) if x.label}
    probs = []
    for i, b in enumerate(out):
        if b.kind == "branch" and b.target in lab:
            pre = []; d = 0
            for p in reversed(out[:i+1]):
                if p is not b and (p.op == "s_branch" or p.op == "s_endpgm"): break
                if p.kind != "none":
                    pre.append(p); d += p.states
                    if d >= WIN: break
            d2 = 0
            for c in out[lab[b.target]:]:
                if c.kind == "none": continue
                dist = d2
                for p in pre:
                    if need(p, c) > dist: probs.append((b.text, p.text, c.text, need(p, c), dist))
                    dist += p.states
                d2 += c.states
                if d2 >= WIN or c.op in ("s_branch","s_endpgm"): break
    if probs:
        for p in probs: print("HAZARD on branch edge:", p)
        raise SystemExit("fix hazards")
    return [x.text for x in out]
```

```python
import sys, struct, math
from asmgen import NAME, KNAME
import hazard

def f2u(x): return struct.unpack("<I", struct.pack("<f", x))[0]

HELLO = 0x1000
QP, SC, OP, HP, O5, STAMP = 0x10000, 0x50000, 0x90000, 0xB0000, 0x100000, 0x200000
O5S = 0x32000
HPL = 0x10000
F_PROG, F_XN, F_MODE, F_Q, F_SP, F_P, F_KR, F_VR, F_H, F_W2 = 0, 4, 8, 12, 16, 20, 24, 28, 32, 36
L_XN, L_Q, L_WQ, L_P, L_RED2, L_H, L_HH, L_V, L_WT = 64, 3648, 4736, 19072, 21120, 29312, 30464, 32768, 98304
L_X = L_RED2
LDS_SIZE = 163840
BIG = 1 << 22
M56 = (1 << 56) - 1
N14 = 0x3FFF3FFF3FFF3FFF
N8 = 0x00FF00FF00FF00FF
N4 = 0x000F000F000F000F
N2 = 0x0003000300030003
ALL = (1 << 64) - 1
FINPROBE = (9, 4, 7, 0, None)

class Gen:
    def __init__(s, dbg=False, **kw):
        P = dict(pol="nt", polk="nt", polv="nt", polw="nt", prefetch=2, hstart=30, qdepth=1, wqu=2, pad=0, fuseln=2, perturb=0, probe=None, padsel=-1, Wi=20, Wm=20, Ww=24, WT=32, G=2, vend=0, vd=12, Wh=0, skx=5, W0=0, catch=None, Wk=20, vcom=0, boost=None, B=4, wlate=0, qstart=42, sstart=98,
                 krot=1, fast=True, pretouch=2, wqx=0, wqn=14, khold=0, pt2=2, pfpol='', WL=28, W2=24, trigwo=154, trigw2=150, hpw2=False, wo7=8, R5=1, fatom=False, hdepth=1, w1in=True, sl=0, outpol='', outpt=None, hgap=3, rep5=True, fgap=6, hscalar=False, sdepth=2, sgap=12, findelay=9, wostart=178, hpstart=234)
        P.update(kw)
        s.__dict__.update(P)
        s.L = []; s.dbg = dbg; s.uid = 0
    def __call__(s, t):
        for l in t.split("\n"):
            l = l.strip()
            if l: s.L.append(l)
    def lab(s, base):
        s.uid += 1
        return f"L_{base}_{s.uid}"
    def stamp(s, i):
        if s.dbg or (s.probe and i in (0, s.probe[0])): s(f"s_memrealtime s[{72+2*i}:{73+2*i}]")
    def exec_mask(s, m):
        lo, hi = m & 0xffffffff, m >> 32
        if m == ALL: s("s_mov_b64 exec, -1")
        elif hi == 0 and lo <= 64: s(f"s_mov_b64 exec, {lo}")
        elif lo == 0xffffffff: s(f"s_mov_b32 exec_hi, {hex(hi)}")
        else: s(f"s_mov_b32 exec_lo, {hex(lo)}\ns_mov_b32 exec_hi, {hex(hi)}")
    def exec_all(s): s("s_mov_b64 exec, -1")
    def signal(s, flag):
        s(f"s_mov_b64 exec, 1\nds_add_u32 v5, v6 offset:{flag}\ns_mov_b64 exec, -1")
    def spin(s, flag, n, reads="", sleep=0, tmp=7):
        l = s.lab("spin")
        s(f"s_mov_b32 s7, {BIG}\n{l}:")
        s(f"ds_read_b32 v{tmp}, v5 offset:{flag}")
        if reads: s(reads)
        s(f"s_sub_u32 s7, s7, 1\ns_cbranch_scc1 L_end")
        s(f"s_waitcnt lgkmcnt(0)\nv_cmp_gt_u32 vcc, {n}, v{tmp}")
        if sleep:
            l2 = s.lab("spind")
            s(f"s_cbranch_vccz {l2}\ns_sleep {sleep}\ns_branch {l}\n{l2}:")
        else:
            s(f"s_cbranch_vccnz {l}")
    def srd(s, r, p, size):
        s(f"s_mov_b32 s{r}, s{p}\ns_mov_b32 s{r+1}, s{p+1}\ns_mov_b32 s{r+2}, {hex(size)}\ns_mov_b32 s{r+3}, 0x20000")
    def tags(s):
        s("s_add_u32 s34, s34, 0x9E3779B9")
        s("s_and_b32 s48, s34, 0xff\ns_bfe_u32 s49, s34, 0x80008\ns_bfe_u32 s50, s34, 0x80010\ns_lshr_b32 s51, s34, 24")
    def strip_check(s, regs, acc, tagsrc):
        for k, r in enumerate(regs):
            s(f"v_xor_b32 v{r}, {tagsrc(k)}, v{r}")
        rs = list(regs)
        s(f"v_or3_b32 v{acc}, v{rs[0]}, v{rs[1]}, v{rs[2]}"); rs = rs[3:]
        while rs:
            if len(rs) >= 2: s(f"v_or3_b32 v{acc}, v{acc}, v{rs[0]}, v{rs[1]}"); rs = rs[2:]
            else: s(f"v_or_b32 v{acc}, v{acc}, v{rs[0]}"); rs = rs[1:]
        s(f"v_and_b32 v{acc}, v4, v{acc}\nv_cmp_ne_u32 vcc, 0, v{acc}")
    def poll(s, loads, regs, acc, pre="", mid=None, cnt=None, chk=None):
        l = s.lab("poll")
        s(f"s_mov_b32 s7, {BIG}\n{l}:")
        if pre: s(pre)
        s(loads)
        if mid: mid()
        if chk: s(f"{chk}:")
        s(f"s_sub_u32 s7, s7, 1\ns_cbranch_scc1 L_end")
        s("s_waitcnt vmcnt(0)")
        s.strip_check(regs, acc, lambda k: f"s{48 + (k & 3)}")
        s(f"s_cbranch_vccnz {l}")
        if s.dbg and cnt is not None: s(f"s_sub_u32 s{72+2*cnt}, {BIG}, s7")
    def ppoll(s, loadf0, nreg, nld, depth, gap, acc, cnt=None, byset=False, base0=64, mid=None):
        l, ld = s.lab("pp"), s.lab("ppd")
        base = (lambda d: base0[d]) if isinstance(base0, list) else (lambda d: base0 + nreg*d)
        loadf = (lambda b: loadf0(b, (b - 64)//nreg)) if byset else loadf0
        s(f"s_mov_b32 s7, {BIG}")
        for d in range(depth - 1):
            s(loadf(base(d)))
            if gap: s(f"s_sleep {gap}")
        s(f"{l}:")
        for d in range(depth):
            s(loadf(base((d + depth - 1) % depth)))
            if mid and d == 0: mid()
            s(f"s_sub_u32 s7, s7, 1\ns_cbranch_scc1 L_end")
            s(f"s_waitcnt vmcnt({(depth-1)*nld})")
            for k in range(nreg): s(f"v_xor_b32 v{32+k}, s{48 + (k & 3)}, v{base(d)+k}")
            rs = list(range(32, 32+nreg))
            s(f"v_or3_b32 v{acc}, v{rs[0]}, v{rs[1]}, v{rs[2]}"); rs = rs[3:]
            while rs:
                if len(rs) >= 2: s(f"v_or3_b32 v{acc}, v{acc}, v{rs[0]}, v{rs[1]}"); rs = rs[2:]
                else: s(f"v_or_b32 v{acc}, v{acc}, v{rs[0]}"); rs = rs[1:]
            s(f"v_and_b32 v{acc}, v4, v{acc}\nv_cmp_ne_u32 vcc, 0, v{acc}")
            if d < depth - 1: s(f"s_cbranch_vccz {ld}")
            else: s(f"s_cbranch_vccnz {l}")
        s(f"{ld}:")
        if s.dbg and cnt is not None: s(f"s_sub_u32 s{72+2*cnt}, {BIG}, s7")
    def try_reads(s, bit, thr, reads, tmp, flag=F_PROG):
        l = s.lab("try")
        s(f"s_bitcmp1_b32 s35, {bit}\ns_cbranch_scc1 {l}")
        s(f"ds_read_b32 v{tmp}, v5 offset:{flag}\ns_waitcnt lgkmcnt(0)\nv_cmp_gt_u32 vcc, {hex(thr)}, v{tmp}\ns_cbranch_vccnz {l}")
        s(reads)
        s(f"s_bitset1_b32 s35, {bit}\n{l}:")
    def must_reads(s, bit, thr, reads, tmp, sleep=0, flag=F_PROG):
        l = s.lab("must")
        s(f"s_bitcmp1_b32 s35, {bit}\ns_cbranch_scc1 {l}")
        s.spin(flag, hex(thr), tmp=tmp, sleep=sleep)
        s(reads)
        s(f"{l}:")
    def publish(s, mask, store):
        if mask is not None: s.exec_mask(mask)
        if True:
            l1, l2 = s.lab("slow"), s.lab("pubd")
            s(f"s_cmp_lg_u32 s42, 1\ns_cbranch_scc1 {l1}\n{store}\ns_branch {l2}\n{l1}:\n{store} sc1\n{l2}:")
        else:
            s(f"{store} sc1")
    def publish2(s, data, voff, R=1, stride=0):
        s(f"buffer_store_dword v{data}, v{voff}, s[36:39], s12 offen sc1")
        l1, l2 = s.lab("slow"), s.lab("pubd")
        st = f"buffer_store_dword v{data}, v{voff}, s[36:39], s13 offen"
        s(f"s_cmp_lg_u32 s42, 1\ns_cbranch_scc1 {l1}\n{st}\ns_branch {l2}\n{l1}:\n{st} sc1\n{l2}:")
        for k in range(1, R):
            s(f"s_add_u32 s13, s13, {stride}\nbuffer_store_dword v{data}, v{voff}, s[36:39], s13 offen sc1")
    def reduce2(s, a, b, op="add"):
        for m in ("row_shr:1 row_mask:0xf", "row_shr:2 row_mask:0xf", "row_shr:4 row_mask:0xf", "row_shr:8 row_mask:0xf", "row_bcast:15 row_mask:0xa", "row_bcast:31 row_mask:0xc"):
            for r in (a, b):
                if r is not None: s(f"v_{op}_f32_dpp v{r}, v{r}, v{r} {m} bank_mask:0xf")
    def layernorm(s, x, t, o, cI, cM, unpack, mask, pivot=True):
        S1, S2 = t+8, t+9
        if pivot:
            s(f"v_readfirstlane_b32 s60, v{x}\nv_mov_b32 v{S1}, 0\nv_mov_b32 v{S2}, 0\ns_mov_b32 s61, s60")
            s.exec_mask(mask)
            for i in range(4):
                s(f"v_pk_add_f32 v[{t+2*i}:{t+2*i+1}], v[{x+2*i}:{x+2*i+1}], s[60:61] neg_lo:[0,1] neg_hi:[0,1]")
            d = t
        else:
            s(f"v_mov_b32 v{S1}, 0\nv_mov_b32 v{S2}, 0")
            s.exec_mask(mask)
            d = x
        A, B = t+10, o
        C = o+2
        s(f"v_pk_add_f32 v[{A}:{A+1}], v[{d}:{d+1}], v[{d+2}:{d+3}]")
        s(f"v_pk_mul_f32 v[{B}:{B+1}], v[{d}:{d+1}], v[{d}:{d+1}]")
        s(f"v_pk_add_f32 v[{C}:{C+1}], v[{d+4}:{d+5}], v[{d+6}:{d+7}]")
        s(f"v_pk_fma_f32 v[{B}:{B+1}], v[{d+2}:{d+3}], v[{d+2}:{d+3}], v[{B}:{B+1}]")
        s(f"v_pk_add_f32 v[{A}:{A+1}], v[{A}:{A+1}], v[{C}:{C+1}]")
        s(f"v_pk_fma_f32 v[{B}:{B+1}], v[{d+4}:{d+5}], v[{d+4}:{d+5}], v[{B}:{B+1}]")
        s(f"v_add_f32 v{S1}, v{A}, v{A+1}")
        s(f"v_pk_fma_f32 v[{B}:{B+1}], v[{d+6}:{d+7}], v[{d+6}:{d+7}], v[{B}:{B+1}]")
        s(f"v_add_f32 v{S2}, v{B}, v{B+1}")
        s.exec_all()
        s.reduce2(S1, S2)
        s(f"v_readlane_b32 s62, v{S1}, 63\nv_readlane_b32 s63, v{S2}, 63")
        m1, e2 = S1, S2
        s(f"v_mul_f32 v{m1}, s62, v{cI}\nv_mul_f32 v{e2}, s63, v{cI}")
        s(f"v_fma_f32 v{e2}, -v{m1}, v{m1}, v{e2}")
        if pivot: s(f"v_add_f32 v{m1}, s60, v{m1}")
        s(f"v_max_f32 v{e2}, 0, v{e2}")
        s(f"v_cvt_pk_bf16_f32 v{e2}, v{m1}, v{e2}")
        s(f"v_lshlrev_b32 v{A}, 16, v{e2}\nv_and_b32 v{e2}, v{cM}, v{e2}")
        s(f"v_add_f32 v{e2}, {hex(f2u(1e-5))}, v{e2}")
        sub = lambda i: f"v_pk_add_f32 v[{t+2*i}:{t+2*i+1}], v[{x+2*i}:{x+2*i+1}], v[{A}:{A+1}] op_sel_hi:[1,0] neg_lo:[0,1] neg_hi:[0,1]"
        s(sub(0)); s(f"v_cvt_pk_bf16_f32 v{e2}, v{e2}, v{e2}")
        s(sub(1)); s(f"v_lshlrev_b32 v{e2}, 16, v{e2}")
        s(sub(2)); s(f"v_sqrt_f32 v{e2}, v{e2}")
        s(sub(3))
        s(f"v_cvt_pk_bf16_f32 v{o}, v{t}, v{t+1}")
        s(f"v_cvt_pk_bf16_f32 v{e2}, v{e2}, v{e2}")
        s(f"v_cvt_pk_bf16_f32 v{o+1}, v{t+2}, v{t+3}")
        s(f"v_lshlrev_b32 v{e2}, 16, v{e2}")
        s(f"v_cvt_pk_bf16_f32 v{o+2}, v{t+4}, v{t+5}")
        s(f"v_rcp_f32 v{A}, v{e2}")
        s(f"v_cvt_pk_bf16_f32 v{o+3}, v{t+6}, v{t+7}")
        for i in range(4):
            s(f"v_lshlrev_b32 v{t+2*i}, 16, v{o+i}\nv_and_b32 v{t+2*i+1}, v{cM}, v{o+i}")
        for i in range(4):
            s(f"v_pk_mul_f32 v[{t+2*i}:{t+2*i+1}], v[{t+2*i}:{t+2*i+1}], v[{A}:{A+1}] op_sel_hi:[1,0]")
        for i in range(4):
            s(f"v_cvt_pk_bf16_f32 v{o+i}, v{t+2*i}, v{t+2*i+1}")
        if unpack:
            for i in range(4):
                s(f"v_lshlrev_b32 v{x+2*i}, 16, v{o+i}\nv_and_b32 v{x+2*i+1}, v{cM}, v{o+i}")
    def rnd(s, r):
        s(f"v_cvt_pk_bf16_f32 v{r}, 0, v{r}")
    def ln_fast(s, p, x, t, cI, unp, lanemask=None):
        S1, S2 = t+8, t+9
        for i in range(4):
            c1 = "0" if i == 0 else f"v{S1}"; c2 = "0" if i == 0 else f"v{S2}"
            s(f"v_dot2_f32_bf16 v{S1}, v{p+i}, s60, {c1}\nv_dot2_f32_bf16 v{S2}, v{p+i}, v{p+i}, {c2}")
        s(unp(0)); s(unp(1)); s(unp(2))
        k = 3
        for m in ("row_shr:1 row_mask:0xf", "row_shr:2 row_mask:0xf", "row_shr:4 row_mask:0xf", "row_shr:8 row_mask:0xf", "row_bcast:15 row_mask:0xa", "row_bcast:31 row_mask:0xc"):
            for r in (S1, S2): s(f"v_add_f32_dpp v{r}, v{r}, v{r} {m} bank_mask:0xf")
            if k < 8: s(unp(k)); k += 1
        s(f"v_readlane_b32 s62, v{S1}, 63\nv_readlane_b32 s63, v{S2}, 63")
        s(f"v_mul_f32 v{S1}, s62, v{cI}\nv_mul_f32 v{S2}, s63, v{cI}")
        s(f"v_fma_f32 v{S2}, -v{S1}, v{S1}, v{S2}\nv_cvt_pk_bf16_f32 v{S1}, 0, v{S1}\nv_max_f32 v{S2}, 0, v{S2}")
        sub = lambda i: f"v_pk_add_f32 v[{t+2*i}:{t+2*i+1}], v[{x+2*i}:{x+2*i+1}], v[{S1}:{S1+1}] op_sel_hi:[1,0] neg_lo:[0,1] neg_hi:[0,1]"
        rn = lambda i: f"v_cvt_pk_bf16_f32 v{t+i}, 0, v{t+i}"
        s(sub(0)); s(f"v_cvt_pk_bf16_f32 v{S2}, 0, v{S2}")
        s(sub(1)); s(f"v_add_f32 v{S2}, {hex(f2u(1e-5))}, v{S2}")
        s(sub(2)); s(f"v_cvt_pk_bf16_f32 v{S2}, 0, v{S2}")
        s(sub(3)); s(f"v_sqrt_f32 v{S2}, v{S2}")
        s(rn(0)); s(rn(1)); s(f"v_cvt_pk_bf16_f32 v{S2}, 0, v{S2}")
        s(rn(2)); s(f"v_rcp_f32 v{S1}, v{S2}")
        s(rn(3)); s(rn(4))
        if lanemask is not None: s(f"v_mul_f32 v{S1}, v{lanemask}, v{S1}")
        s(rn(5)); s(rn(6)); s(rn(7))
        for i in range(4):
            s(f"v_pk_mul_f32 v[{t+2*i}:{t+2*i+1}], v[{t+2*i}:{t+2*i+1}], v[{S1}:{S1+1}] op_sel_hi:[1,0]")
        for i in range(4):
            s(f"v_cvt_pk_bf16_f32 v{p+i}, v{t+2*i}, v{t+2*i+1}")
    def sched(s, reads, mfmas, ahead=12, per=2):
        issued = 0
        def issue(n):
            nonlocal issued
            for _ in range(n):
                if issued < len(reads): s(reads[issued]); issued += 1
        issue(ahead)
        for ins, need in mfmas:
            while issued <= need: issue(1)
            assert issued - need - 1 <= 14
            s(f"s_waitcnt lgkmcnt({issued - need - 1})")
            s(ins)
            issue(min(per, 14 - (issued - need - 1)))
        issue(len(reads))
    def prog(s, n):
        s(f"v_add_u32 v7, {n}, v7\nds_write_b32 v5, v7 offset:{F_PROG}")
    def ld1(s, voff, pol, step):
        s(f"buffer_load_dwordx4 v{voff}, s[40:43], s56 offen {pol} lds\ns_add_u32 m0, m0, s60\ns_addk_i32 s56, {step}")
    def kld(s, u):
        s.ld1(9, s.polk, 128 if u % 4 < 3 else 4096-384)
        if u % 4 == 3: s("s_and_b32 s56, s56, 0xffff")
    def seg(s, n, W, G, ldf, u0=0, unroll=4):
        assert n % G == 0
        head = n % unroll
        u = u0
        for k in range(head // G):
            s(f"s_waitcnt vmcnt({W-G})"); s.prog(G)
            for _ in range(G): ldf(u); u += 1
        if n // unroll:
            l = s.lab("seg")
            s(f"s_mov_b32 s58, {n // unroll}\n{l}:")
            for k in range(unroll // G):
                s(f"s_waitcnt vmcnt({W-G})"); s.prog(G)
                for _ in range(G): ldf(u); u += 1
            s(f"s_sub_u32 s58, s58, 1\ns_cmp_lg_u32 s58, 0\ns_cbranch_scc1 {l}")
    def drain(s, W, G):
        for n in range(W-G, -1, -G):
            s(f"s_waitcnt vmcnt({n})"); s.prog(G)
    def bseg(s, n, W, ldf, u0):
        B = s.B
        u = u0
        head = n % 4
        assert head in (0, 2)
        if head:
            s(f"s_waitcnt vmcnt({W-2})"); s.prog(2)
            ldf(u); ldf(u+1); u += 2
        it = n // 4
        la, lb, lc = s.lab("bsa"), s.lab("bsb"), s.lab("bsc")
        s(f"s_min_u32 s58, s62, {it}\ns_sub_u32 s62, s62, s58\ns_sub_u32 s63, {it}, s58\ns_cmp_eq_u32 s58, 0\ns_cbranch_scc1 {lb}")
        s(f"v_subrev_u32 v7, {B}, v7\n{la}:")
        for k in range(2):
            s(f"s_waitcnt vmcnt({W+B-2})\nv_add_u32 v7, 2, v7\nv_max_i32 v11, 0, v7\nds_write_b32 v5, v11 offset:{F_PROG}")
            ldf(u + 2*k); ldf(u + 2*k + 1)
        s(f"s_sub_u32 s58, s58, 1\ns_cmp_lg_u32 s58, 0\ns_cbranch_scc1 {la}")
        s(f"v_add_u32 v7, {B}, v7\ns_cmp_eq_u32 s63, 0\ns_cbranch_scc1 {lc}")
        s(f"{lb}:")
        for k in range(2):
            s(f"s_waitcnt vmcnt({W-2})"); s.prog(2)
            ldf(u + 2*k); ldf(u + 2*k + 1)
        s(f"s_sub_u32 s63, s63, 1\ns_cmp_lg_u32 s63, 0\ns_cbranch_scc1 {lb}")
        s(f"{lc}:")
    def kseg(s, W):
        G = s.G
        W0 = max(W, s.W0)
        pre = max(0, W0 - 18)
        if s.khold:
            s(f"s_getreg_b32 s6, hwreg(HW_REG_XCC_ID, 2, 1)\ns_cmp_lg_u32 s6, 0\ns_cbranch_scc1 L_nkh\ns_waitcnt vmcnt(14)\nv_mov_b32 v7, 4\nds_write_b32 v5, v7 offset:{F_PROG}\ns_waitcnt vmcnt({s.khold-1})\nL_nkh:")
        for u in range(pre): s.kld(u)
        s(f"v_mov_b32 v7, {18 + pre - W0}")
        s.stamp(2)
        n = 64 - pre
        if s.catch or W0 != W:
            k = 16 if W0 >= 18 else 16 - (18 - W0)
            u = pre
            for q in range(k // 2):
                s(f"s_waitcnt vmcnt({W0-2})"); s.prog(2); s.kld(u); s.kld(u+1); u += 2
            n -= k; pre += k
            if s.catch:
                t0, mul, cap = s.catch
                s(f"s_waitcnt vmcnt({W0-2})\ns_memrealtime s[62:63]"); s.prog(2); s("v_subrev_u32 v7, 2, v7")
                s(f"s_waitcnt lgkmcnt(0)\ns_sub_u32 s62, s62, s46\ns_sub_u32 s62, s62, {t0}\ns_cselect_b32 s62, 0, s62\ns_mul_i32 s62, s62, {mul}\ns_lshr_b32 s62, s62, 4\ns_min_u32 s62, s62, {cap}")
            if W0 != W: s(f"v_add_u32 v7, {W0 - W}, v7")
        if s.boost or s.catch: s.bseg(n, W, s.kld, pre)
        else: s.seg(n, W, G, s.kld, pre)
        s.stamp(3)
        s("s_mov_b64 s[40:41], s[12:13]\ns_mov_b32 s42, 0x4000000\ns_mov_b32 s56, s61")
        s(f"s_mov_b32 m0, {L_V}")
    def kv(s, W):
        G = s.G
        vf = lambda u: s.ld1(10, s.polv, 4096)
        n = 64
        if s.Wk:
            n -= s.vcom
            if W != s.Wk: s(f"v_add_u32 v7, {s.Wk - W}, v7")
        else: s.kseg(W)
        n -= s.vend
        if s.boost or s.catch: s.bseg(n, W, vf, 0)
        else: s.seg(n, W, G, vf)
        if s.vend:
            D = min(s.vd, 32 - W) if s.vd else 0
            s(f"v_subrev_u32 v7, {D}, v7")
            s.seg(s.vend, W + D, G, vf)
            s.stamp(4)
            Wn = s.Wh if (s.Wh and W != s.Ww) else W
            for k in range(W + D - 2, Wn - 1, -2):
                if W == s.Ww and k < s.WT: break
                s(f"s_waitcnt vmcnt({k})"); s.prog(2)
        else: s.stamp(4)
    def tr_addr4(s, dst, base_s, t1, t2):
        s(f"v_lshrrev_b32 v{t1}, 2, v2\nv_lshl_add_u32 v{t1}, v3, 2, v{t1}\nv_bfe_u32 v{t2}, v{t1}, 1, 2\nv_lshlrev_b32 v{t1}, 7, v{t1}\nv_lshl_add_u32 v{t1}, v{t2}, 5, v{t1}")
        s(f"v_and_b32 v{t2}, 3, v2\nv_lshl_add_u32 v{t1}, v{t2}, 3, v{t1}\nv_add_u32 v{dst}, {base_s}, v{t1}")
        s(f"v_xor_b32 v{dst+1}, 32, v{dst}\nv_xor_b32 v{dst+2}, 64, v{dst}\nv_xor_b32 v{dst+3}, 0x60, v{dst}")
    def perm_pos(s, dst, col, t):
        s(f"v_lshrrev_b32 v{dst}, 5, v{col}\nv_lshlrev_b32 v{dst}, 6, v{dst}\nv_bfe_u32 v{t}, v{col}, 2, 2\nv_lshl_add_u32 v{dst}, v{t}, 4, v{dst}")
        s(f"v_bfe_u32 v{t}, v{col}, 4, 1\nv_lshl_add_u32 v{dst}, v{t}, 3, v{dst}\nv_and_b32 v{t}, 3, v{col}\nv_lshl_add_u32 v{dst}, v{t}, 1, v{dst}")
    def ids(s):
        s("s_and_b32 s6, s5, 3\ns_lshl_b32 s6, s6, 3\ns_add_u32 s55, s4, s6\ns_lshr_b32 s59, s5, 2")
        s("s_bfe_u32 s65, s5, 0x20002\ns_lshr_b32 s66, s5, 4")
        if s.skx: s(f"s_mul_i32 s69, s59, {s.skx}\ns_add_u32 s69, s69, s2\ns_and_b32 s69, s69, 15")
        else: s(f"s_mul_i32 s69, s2, {s.krot}\ns_and_b32 s69, s69, 15")
        s("v_mov_b32 v5, 0")
    def mlp_ids(s, none, j=68, b=70):
        s(f"s_sub_u32 s6, s5, 8\ns_cmp_ge_u32 s6, 16\ns_cbranch_scc1 {none}")
        s(f"s_and_b32 s{b}, s6, 3\ns_lshr_b32 s6, s6, 2\ns_lshl_b32 s{j}, s6, 3\ns_add_u32 s{j}, s{j}, s4\ns_cmp_ge_u32 s{j}, 28\ns_cbranch_scc1 {none}")

    def build(s):
        KARG = "s_load_dwordx16 s[8:23], s[0:1], 0\ns_load_dwordx8 s[24:31], s[0:1], 64\ns_load_dwordx2 s[32:33], s[0:1], 96"
        IDS0 = "s_lshr_b32 s5, s2, 3\ns_cmp_ge_u32 s5, 32\ns_cbranch_scc1 L_end\ns_and_b32 s4, s2, 7\ns_lshl_b32 s53, s4, 3\ns_and_b32 s6, s5, 7\ns_add_u32 s53, s53, s6\ns_lshr_b32 s54, s5, 3"
        s.stamp(0)
        if s.pad: s("s_memrealtime s[100:101]")
        s("v_cmp_gt_u32 vcc, 64, v0\ns_cbranch_vccnz L_ld")
        s(f"v_mov_b32 v5, 0\nv_and_b32 v1, 63, v0\nv_lshlrev_b32 v7, 2, v1\nds_write_b32 v7, v5 offset:{L_H+896-64}\nv_and_b32 v7, 60, v7\nds_write_b32 v7, v5")
        s("s_waitcnt lgkmcnt(0)\ns_barrier\ns_branch L_notld")
        s("L_ld:")
        s(KARG)
        if s.catch: s("s_memrealtime s[46:47]")
        s("v_mov_b32 v1, v0")
        if s.dbg or s.pad or s.probe: s("s_mov_b32 s3, -1")
        s(IDS0)
        if s.prefetch == 2:
            s(f"s_getpc_b64 s[44:45]\nL_pc:\ns_lshl_b32 s6, s5, 9\nv_lshl_add_u32 v8, v1, 7, s6\nv_min_u32 v8, L_end-L_pc, v8")
            s("s_mov_b64 exec, 15\nglobal_load_dword v0, v8, s[44:45]\ns_mov_b64 exec, -1")
        s("v_lshrrev_b32 v12, 3, v1\nv_and_b32 v13, 7, v1\nv_lshlrev_b32 v8, 4, v1")
        s("v_and_b32 v14, 6, v12\nv_xor_b32 v14, v14, v13\nv_lshlrev_b32 v14, 4, v14")
        s("v_lshl_add_u32 v17, v12, 13, v14")
        s(f"s_mulk_i32 s54, {112*64}\ns_add_u32 s56, s54, s53\ns_lshl_b32 s56, s56, 7")
        s(f"s_movk_i32 m0, {L_X}\ns_movk_i32 s42, 3584\ns_mov_b32 s43, 0x20000\ns_movk_i32 s60, 1024\ns_lshl_b32 s61, s60, 6\ns_movk_i32 s58, {L_WQ + 14*1024}")
        if s.wqx >= 3:
            s("s_xor_b32 s57, s56, 0x1000\nv_lshlrev_b32 v9, 13, v1\ns_lshl_b32 s50, s42, 10\ns_mov_b32 s51, s43\ns_getreg_b32 s6, hwreg(HW_REG_XCC_ID, 2, 1)\ns_add_u32 s59, s57, 0x80000\ns_cmp_lg_u32 s6, 0")
        s("s_barrier\ns_waitcnt lgkmcnt(0)")
        s.stamp(1)
        if s.wqx >= 3:
            s("s_mov_b64 s[48:49], s[14:15]")
            if s.wqx in (3, 5): s("s_cbranch_scc1 L_nwqx")
            if s.wqx == 5:
                s(f"s_add_u32 s59, s57, {s.wqn*0x10000}\ns_mov_b32 m0, {L_V}\nL_wqxl:")
                for u in range(2): s("buffer_load_dwordx4 v17, s[48:51], s57 offen lds\ns_add_u32 s57, s57, s61")
                s(f"s_cmp_lg_u32 s57, s59\ns_cbranch_scc1 L_wqxl\ns_movk_i32 m0, {L_X}\nL_nwqx:")
            else:
                s("buffer_load_dword v0, v9, s[48:51], s57 offen\ns_mov_b32 exec_hi, 0xffff\nbuffer_load_dword v0, v9, s[48:51], s59 offen\ns_mov_b32 exec_hi, -1\nL_nwqx:")
        s("s_mov_b64 s[40:41], s[8:9]")
        for i in range(4):
            s(f"buffer_load_dwordx4 v8, s[40:43], 0 offen offset:{i*1024} lds")
        s(f"s_movk_i32 m0, {L_WQ}\ns_mov_b64 s[40:41], s[14:15]\ns_lshl_b32 s42, s42, 10")
        s("L_wql:")
        for u in range(s.wqu):
            s(f"buffer_load_dwordx4 v17, s[40:43], s56 offen {s.pol} lds\ns_add_u32 m0, m0, s60\ns_add_u32 s56, s56, s61")
        if s.wqu < 14: s("s_cmp_lg_u32 m0, s58\ns_cbranch_scc1 L_wql")
        s.ids()
        s("v_xor_b32 v9, v12, v13\nv_lshlrev_b32 v9, 4, v9\nv_lshl_add_u32 v9, v12, 9, v9")
        s("s_lshl_b32 s57, s55, 21\ns_add_u32 s57, s57, 0x180000\ns_lshl_b32 s6, s59, 16\ns_add_u32 s6, s6, s57")
        s(f"s_lshl_b32 s56, s69, 12\ns_mov_b32 m0, {L_WT}")
        s("s_add_u32 s40, s10, s6\ns_addc_u32 s41, s11, 0\ns_mov_b32 s42, 0x10000")
        s("v_lshl_add_u32 v10, v12, 9, v14")
        s("s_lshl_b32 s61, s66, 18\ns_add_u32 s61, s61, s57\ns_lshl_b32 s6, s65, 7\ns_add_u32 s61, s61, s6")
        if s.dbg:
            for i in range(76, 102): s(f"s_mov_b32 s{i}, 0")
            s.srd(36, 32, 0x10000000)
        if s.boost:
            lo = sum(v << (8*k) for k, v in enumerate(s.boost[:4])); hi = sum(v << (8*k) for k, v in enumerate(s.boost[4:]))
            s(f"s_getreg_b32 s6, hwreg(HW_REG_XCC_ID, 0, 3)\ns_lshl_b32 s6, s6, 3\ns_mov_b32 s62, {hex(lo)}\ns_mov_b32 s63, {hex(hi)}\ns_lshr_b64 s[62:63], s[62:63], s6\ns_and_b32 s62, s62, 0xff")
        Wi, Wm, Ww, WT, G = s.Wi, s.Wm, s.Ww, s.WT, s.G
        if s.Wk:
            s.kseg(s.Wk)
            if s.vcom: s.seg(s.vcom, s.Wk, G, lambda u: s.ld1(10, s.polv, 4096))
        s("s_cmp_lt_u32 s5, 7\ns_cbranch_scc1 L_ld_wo")
        s.mlp_ids("L_ld_idle")
        def help_wo(W):
            s(f"s_mov_b64 s[40:41], s[16:17]\ns_mov_b32 s42, {4096*896}\nv_lshlrev_b32 v8, 4, v1")
            s(f"s_mul_i32 s56, s4, {512*896}\ns_mul_i32 s6, s5, 9216\ns_add_u32 s56, s56, s6\ns_add_u32 s56, s56, {256*896 - 7*9216}\ns_movk_i32 m0, {L_WQ}")
            s.spin(F_KR, 4, tmp=11)
            s.seg(10, W, G, hl, unroll=2)
        hl = lambda u: s(f"buffer_load_dwordx4 v8, s[40:43], s56 offen {s.pfpol} lds\ns_add_u32 s56, s56, s60")
        s.kv(Wm)
        if s.vend and s.Wh: Wm = s.Wh
        help_wo(Wm)
        s(f"s_mov_b64 s[40:41], s[20:21]\ns_mov_b32 s42, {448*3584}")
        s("v_mul_u32_u24 v8, 3584, v12\nv_add_u32 v8, v8, v14")
        s(f"s_mul_i32 s56, s70, {14*28672}\ns_lshl_b32 s6, s68, 7\ns_add_u32 s56, s56, s6\ns_mul_i32 s6, s70, {14*1024}\ns_add_u32 m0, s6, {L_WT}")
        f1 = lambda u: s.ld1(8, s.pfpol, 8*3584)
        s.seg(14, Wm, G, f1, unroll=2)
        s.stamp(8)
        s("s_mov_b32 s58, 3\nL_w1q:")
        s(f"s_cmp_lg_u32 m0, {L_WT + 57344}\ns_cbranch_scc1 L_w1n\ns_mov_b32 m0, {L_WT}\ns_lshl_b32 s56, s68, 7\nL_w1n:")
        for h in range(2):
            s(f"s_waitcnt vmcnt({s.WL - 7})")
            for u in range(7): s.ld1(8, s.polw, 8*3584)
        s("s_sub_u32 s58, s58, 1\ns_cmp_lg_u32 s58, 0\ns_cbranch_scc1 L_w1q")
        s.stamp(5)
        s(f"v_mov_b32 v7, 0xd4\ns_waitcnt vmcnt(0)\nds_write_b32 v5, v7 offset:{F_PROG}")
        s.stamp(7)
        s("s_branch L_fin")
        s("L_ld_wo:")
        s.kv(Ww)
        s(f"s_mov_b64 s[40:41], s[16:17]\ns_mov_b32 s42, {4096*896}")
        s("v_mul_u32_u24 v8, 896, v12\nv_add_u32 v8, v8, v14")
        s(f"s_mul_i32 s56, s4, {512*896}\ns_lshl_b32 s6, s5, 7\ns_add_u32 s56, s56, s6")
        s(f"s_mov_b32 m0, {L_WT}\nv_add_u32 v7, {(Ww + min(s.vd, 32 - Ww) if s.vend else Ww) - WT}, v7")
        s.spin(F_KR, 4, tmp=11)
        s.stamp(8)
        s.seg(32, WT, G, lambda u: s.ld1(8, s.polw, 8*896))
        s.stamp(5)
        s.drain(WT, G)
        s.stamp(7)
        s("s_branch L_fin")
        s("L_ld_idle:")
        s.kv(Wi)
        if s.vend and s.Wh: Wi = s.Wh
        help_wo(Wi)
        s("s_cmp_lt_u32 s5, 24\ns_cbranch_scc1 L_ld_id")
        s(f"s_mov_b64 s[40:41], s[24:25]\ns_mov_b32 s42, {1792*896}")
        s("s_bfe_u32 s6, s5, 0x20001\ns_lshl_b32 s6, s6, 3\ns_add_u32 s6, s6, s4\ns_lshl_b32 s6, s6, 1\ns_and_b32 s56, s5, 1\ns_add_u32 s56, s56, s6\ns_mul_i32 s56, s56, 28672")
        s.seg(28, Wi, G, hl)
        s("L_ld_id:")
        s.stamp(6)
        s.drain(Wi, G)
        s.stamp(7)
        s("s_branch L_fin")
        s("L_notld:")
        s(KARG)
        s("v_readfirstlane_b32 s3, v0")
        s(IDS0)
        s("s_lshr_b32 s3, s3, 6\ns_sub_u32 s3, s3, 1")
        if s.wqx in (1, 2):
            s(f"s_mul_i32 s56, s54, {112*64}\ns_xor_b32 s6, s53, 32\ns_add_u32 s56, s56, s6\ns_lshl_b32 s56, s56, 7\nv_lshlrev_b32 v8, 13, v1\ns_mov_b32 s62, {448*8192}\ns_mov_b32 s63, 0x20000")
        s("s_waitcnt lgkmcnt(0)\ns_load_dword s34, s[32:33], 0")
        if s.wqx in (1, 2):
            s("s_cmp_lg_u32 s3, 7\ns_cbranch_scc1 L_nwqx\ns_mov_b64 s[60:61], s[14:15]")
            if s.wqx == 2: s("s_getreg_b32 s6, hwreg(HW_REG_XCC_ID, 0, 4)\ns_cmp_ge_u32 s6, 4\ns_cbranch_scc1 L_nwqx")
            s("buffer_load_dword v0, v8, s[60:63], s56 offen\ns_add_u32 s56, s56, 0x80000\ns_mov_b32 exec_hi, 0xffff\nbuffer_load_dword v0, v8, s[60:63], s56 offen\ns_mov_b32 exec_hi, -1\nL_nwqx:")
        s.ids()
        s("v_and_b32 v2, 15, v1\nv_lshrrev_b32 v3, 4, v1\nv_mov_b32 v4, 0xff\nv_mov_b32 v6, 1")
        if s.dbg:
            for i in range(74, 102): s(f"s_mov_b32 s{i}, 0")
        if s.probe and s.probe[0]: s(f"s_mov_b32 s{72+2*s.probe[0]}, 0")
        s.srd(36, 32, 0x10000000)
        s("s_cmp_ge_u32 s3, 4\ns_cbranch_scc1 L_comm")
        s(f"v_mov_b32 v30, {hex(f2u(1.0/448))}\nv_mov_b32 v31, 0xffff0000")
        s("v_lshrrev_b32 v44, 2, v2\nv_lshl_add_u32 v44, v3, 2, v44\nv_bfe_u32 v45, v44, 1, 2\nv_lshlrev_b32 v44, 7, v44")
        s("v_and_b32 v41, 3, v2\nv_lshl_add_u32 v44, v41, 3, v44")
        s("s_lshl_b32 s6, s3, 1\ns_and_b32 s6, s6, 3\nv_xor_b32 v40, s6, v45\nv_lshl_add_u32 v40, v40, 5, v44\nv_xor_b32 v43, 32, v40")
        s("v_lshlrev_b32 v42, 14, v41\nv_mul_u32_u24 v41, 896, v41\nv_lshl_add_u32 v41, v3, 3, v41\ns_mul_i32 s6, s54, 224\nv_add_u32 v41, s6, v41")
        s("v_bfe_u32 v46, v2, 2, 1\nv_lshl_add_u32 v42, v46, 6, v42\nv_lshl_add_u32 v42, v3, 4, v42\nv_cmp_ne_u32 s[46:47], 0, v46")
        s(f"s_lshl_b32 s58, s54, 16\ns_lshl_b32 s6, s53, 8\ns_add_u32 s58, s58, s6\ns_lshl_b32 s6, s3, 7\ns_add_u32 s58, s58, s6\ns_add_u32 s58, s58, {QP}")
        s("s_mul_i32 s6, s3, 896\nv_lshl_add_u32 v16, v1, 4, s6")
        if s.pt2 & 4:
            s("s_cmp_ge_u32 s3, 2\ns_cbranch_scc1 L_nqt")
            s.exec_mask(N8)
            s("buffer_load_dword v0, v42, s[36:39], s58 offen sc1")
            s.exec_all()
            s("L_nqt:")
        s.spin(F_PROG, 4, f"ds_read_b128 v[32:35], v16 offset:{L_X}")
        s.stamp(2)
        for i in range(4):
            s(f"v_lshlrev_b32 v{48+2*i}, 16, v{32+i}\nv_and_b32 v{49+2*i}, v31, v{32+i}")
        s.layernorm(48, 18, 8, 30, 31, False, M56)
        s.exec_mask(M56)
        s(f"ds_write_b128 v16, v[8:11] offset:{L_XN}")
        s.signal(F_XN)
        s.tags()
        s.stamp(3)
        s("s_cmp_ge_u32 s3, 2\ns_cbranch_scc1 L_qdone")
        l = s.lab("spin")
        s(f"s_mov_b32 s7, {BIG}\n{l}:")
        s("ds_read_b64 v[20:21], v5")
        s(f"s_sub_u32 s7, s7, 1\ns_cbranch_scc1 L_end")
        s(f"s_waitcnt lgkmcnt(0)\nv_cmp_gt_u32 vcc, 18, v20\nv_cmp_gt_u32 s[62:63], 6, v21\ns_or_b64 vcc, vcc, s[62:63]")
        s(f"s_cbranch_vccnz {l}")
        rd = []; mm = []
        for i in range(7):
            rd += [f"ds_read_b64 v[{76+2*i}:{77+2*i}], v41 offset:{L_XN + i*32}", f"ds_read_b64_tr_b16 v[{48+2*i}:{49+2*i}], v40 offset:{L_WQ + i*2048}", f"ds_read_b64_tr_b16 v[{62+2*i}:{63+2*i}], v43 offset:{L_WQ + i*2048}"]
            for u in range(2):
                c = "0" if i == 0 else f"v[{20+4*u}:{23+4*u}]"
                mm.append((f"v_mfma_f32_16x16x16_bf16 v[{20+4*u}:{23+4*u}], v[{48+14*u+2*i}:{49+14*u+2*i}], v[{76+2*i}:{77+2*i}], {c}", 3*i+1+u))
        s.sched(rd, mm)
        for i in range(4): s(f"v_cndmask_b32 v{20+i}, v{20+i}, v{24+i}, s[46:47]")
        for i in range(4): s(f"v_add_u32 v{20+i}, 0x80, v{20+i}")
        for i in range(4): s(f"v_bfi_b32 v{32+i}, v4, s{48+i}, v{20+i}")
        s.exec_mask(N8)
        s("buffer_store_dwordx4 v[32:35], v42, s[36:39], s58 offen")
        s.exec_all()
        s.stamp(4)
        s("L_qdone:")
        s("s_call_b64 s[44:45], L_setup")
        s("v_and_b32 v26, 7, v2\nv_xor_b32 v24, v26, v3\nv_xor_b32 v25, 4, v24\nv_lshlrev_b32 v26, 7, v26\nv_lshrrev_b32 v27, 3, v2\nv_lshl_add_u32 v26, v27, 12, v26")
        s(f"s_lshl_b32 s6, s3, 13\ns_add_u32 s6, s6, {L_WT}\nv_add_u32 v26, s6, v26\nv_lshl_add_u32 v24, v24, 4, v26\nv_lshl_add_u32 v25, v25, 4, v26")
        s(f"v_and_b32 v36, 1, v2\nv_lshlrev_b32 v27, 12, v36\nv_lshlrev_b32 v26, 9, v36\nv_lshl_add_u32 v26, v3, 4, v26")
        s("v_lshrrev_b32 v37, 1, v2\nv_lshlrev_b32 v37, 3, v37\nv_lshrrev_b32 v38, 1, v3\nv_add_u32 v37, v37, v38\ns_lshl_b32 s6, s3, 1\ns_add_u32 s6, s6, s69\nv_add_u32 v37, s6, v37\nv_and_b32 v37, 15, v37")
        s("v_lshl_add_u32 v27, v37, 5, v27\nv_and_b32 v38, 1, v3\nv_lshl_add_u32 v27, v38, 4, v27")
        s(f"s_lshl_b32 s67, s55, 13\ns_lshl_b32 s6, s59, 9\ns_add_u32 s67, s67, s6\ns_add_u32 s67, s67, {SC}")
        s("s_lshl_b32 s56, s3, 3\ns_add_u32 s56, s56, 26\ns_add_u32 s57, s56, 32")
        s("v_and_b32 v38, 2, v2\nv_cmp_ne_u32 s[60:61], 0, v38")
        s("v_lshlrev_b32 v38, 6, v36\nv_lshlrev_b32 v37, 10, v36\nv_lshl_add_u32 v37, v3, 4, v37\nv_lshl_add_u32 v38, v3, 4, v38")
        s(f"v_xor_b32 v36, s3, v45\nv_lshl_add_u32 v36, v36, 5, v44\nv_add_u32 v36, {L_V}, v36\nv_mov_b32 v39, 0xffff0000")
        s("s_lshl_b32 s68, s66, 16\ns_lshr_b32 s6, s55, 3\ns_lshl_b32 s6, s6, 14\ns_add_u32 s68, s68, s6\ns_lshl_b32 s6, s4, 11\ns_add_u32 s68, s68, s6")
        s(f"s_lshl_b32 s6, s65, 9\ns_add_u32 s68, s68, s6\ns_lshl_b32 s6, s3, 7\ns_add_u32 s68, s68, s6\ns_add_u32 s68, s68, {OP}")
        KR, QR = 64, 128
        if s.pt2 & 1:
            s.exec_mask(N4)
            s("buffer_load_dword v0, v27, s[36:39], s67 offen sc1")
        if s.pt2 & 2:
            s.exec_mask(1)
            s("buffer_load_dword v0, v38, s[36:39], s68 offen sc1")
        if s.pt2 & 24:
            for i in range(4): s(f"v_xor_b32 v{28+i}, s{48+i}, v4")
        if s.pt2 & 8:
            s.exec_mask(N4)
            s("buffer_store_dwordx4 v[28:31], v27, s[36:39], s67 offen")
        if s.pt2 & 16:
            s.exec_mask(N2)
            s("buffer_store_dwordx4 v[28:31], v38, s[36:39], s68 offen")
        s.exec_all()
        krd = lambda t: "\n".join(f"ds_read_b128 v[{KR+(t*8+j)*4}:{KR+(t*8+j)*4+3}], v{24+(j&1)} offset:{t*32768 + (j>>1)*1024}" for j in range(8))
        def kmm(t):
            for j in range(8):
                r = KR + (t*8+j)*4
                c = "0" if j == 0 else f"v[{28+4*t}:{31+4*t}]"
                s(f"v_mfma_f32_16x16x32_bf16 v[{28+4*t}:{31+4*t}], v[{r}:{r+3}], v[{QR+4*j}:{QR+4*j+3}], {c}")
        s.spin(F_PROG, "s56", sleep=1)
        s(krd(0))
        s.spin(F_MODE, 1, sleep=1)
        s("v_readfirstlane_b32 s42, v7")
        s("s_cmp_eq_u32 s42, 1\ns_cbranch_scc1 L_qok\ns_cmp_ge_u32 s3, 2\ns_cbranch_scc1 L_qok")
        s.exec_mask(N8)
        s("buffer_store_dwordx4 v[32:35], v42, s[36:39], s58 offen sc1")
        s.exec_all()
        s("L_qok:")
        qrl = [f"ds_read_b128 v[{QR+4*j}:{QR+4*j+3}], v26 offset:{L_Q + j*64}" for j in range(8)]
        kmi = lambda t, j: f"v_mfma_f32_16x16x32_bf16 v[{28+4*t}:{31+4*t}], v[{KR+(t*8+j)*4}:{KR+(t*8+j)*4+3}], v[{QR+4*j}:{QR+4*j+3}], " + ("0" if j == 0 else f"v[{28+4*t}:{31+4*t}]")
        l = s.lab("spin")
        s(f"s_mov_b32 s7, {BIG}\n{l}:")
        s(f"ds_read_b32 v7, v5 offset:{F_Q}\nds_read_b32 v40, v5 offset:{F_PROG}")
        s(f"s_sub_u32 s7, s7, 1\ns_cbranch_scc1 L_end")
        s(f"s_waitcnt lgkmcnt(0)\nv_cmp_le_u32 vcc, 2, v7\ns_cbranch_vccnz L_qfirst\nv_cmp_gt_u32 vcc, s57, v40\ns_cbranch_vccnz {l}")
        s(krd(1))
        s.stamp(6)
        s.spin(F_Q, 2, "\n".join(qrl))
        s.stamp(5)
        for j in range(8): s(kmi(0, j)); s(kmi(1, j))
        s("s_branch L_qkdone")
        s("L_qfirst:")
        s.stamp(5)
        s.sched(qrl + [f"ds_read_b32 v40, v5 offset:{F_PROG}"] + krd(1).split("\n"), [(kmi(0, j), j) for j in range(8)])
        s("s_waitcnt lgkmcnt(0)\nv_cmp_le_u32 vcc, s57, v40\ns_cbranch_vccnz L_kready")
        s.spin(F_PROG, "s57", krd(1))
        s("L_kready:")
        s.stamp(6)
        kmm(1)
        s("L_qkdone:")
        s.signal(F_KR)
        for i in range(4): s(f"v_cndmask_b32 v{28+i}, v{28+i}, v{32+i}, s[60:61]")
        s("v_cvt_pk_bf16_f32 v32, v28, v29\nv_cvt_pk_bf16_f32 v33, v30, v31")
        s("v_lshl_or_b32 v28, v32, 16, s48\nv_and_or_b32 v29, v32, v39, s49\nv_lshl_or_b32 v30, v33, 16, s50\nv_and_or_b32 v31, v33, v39, s51")
        s.publish(N4, "buffer_store_dwordx4 v[28:31], v27, s[36:39], s67 offen")
        s.signal(F_SP)
        s.stamp(7)
        VR, PR = 40, 104
        trl = lambda ms: [f"ds_read_b64_tr_b16 v[{VR+4*m+2*hf}:{VR+4*m+2*hf+1}], v36 offset:{m*4096 + hf*2048}" for m in ms for hf in range(2)]
        trv = lambda ms: "\n".join(trl(ms))
        pvi = lambda m: f"v_mfma_f32_16x16x32_bf16 v[32:35], v[{VR+4*m}:{VR+4*m+3}], v[{PR+4*m}:{PR+4*m+3}], " + ("0" if m == 0 else "v[32:35]")
        prl = [f"ds_read_b128 v[{PR+4*m}:{PR+4*m+3}], v37 offset:{L_P + m*64}" for m in range(16)]
        s.spin(F_PROG, hex(82 + 4*10), sleep=1)
        s(trv(range(0, 10)))
        l = s.lab("spin")
        s(f"s_mov_b32 s7, {BIG}\n{l}:")
        s(f"ds_read_b32 v7, v5 offset:{F_P}\nds_read_b32 v24, v5 offset:{F_PROG}")
        s(f"s_sub_u32 s7, s7, 1\ns_cbranch_scc1 L_end")
        s(f"s_waitcnt lgkmcnt(0)\nv_cmp_le_u32 vcc, 2, v7\ns_cbranch_vccnz L_pfirst\nv_cmp_gt_u32 vcc, 0x92, v24\ns_cbranch_vccnz {l}")
        s(trv(range(10, 16)))
        s.stamp(8)
        s.signal(F_VR)
        s("v_mov_b32 v6, 0")
        s.spin(F_P, 2)
        s.stamp(9)
        s.sched(prl, [(pvi(m), m) for m in range(16)])
        s("s_branch L_pvdone")
        s("L_pfirst:")
        s.stamp(9)
        s.sched(prl + [f"ds_read_b32 v24, v5 offset:{F_PROG}"] + trl(range(10, 16)), [(pvi(m), m) for m in range(10)])
        s("s_waitcnt lgkmcnt(0)\nv_cmp_gt_u32 vcc, 0x92, v24\ns_cbranch_vccnz L_pvslow")
        for m in range(10, 15): s(pvi(m))
        s("s_branch L_pvlast")
        s("L_pvslow:")
        s.spin(F_PROG, hex(82 + 4*15), trv(range(10, 15)))
        s.stamp(8)
        for m in range(10, 15): s(pvi(m))
        s.spin(F_PROG, hex(146), trv(range(15, 16)))
        s("L_pvlast:")
        s(pvi(15))
        s("L_pvdone:")
        s.exec_mask(N2)
        s("s_nop 5")
        for i in range(4): s(f"v_bfi_b32 v{32+i}, v4, s{48+i}, v{32+i}")
        s.publish(None, "buffer_store_dwordx4 v[32:35], v38, s[36:39], s68 offen")
        s.signal(F_VR)
        s("v_mov_b32 v6, 1")
        s.stamp(10)
        s("s_branch L_tail2")
        s("L_comm:")
        s("s_sub_u32 s52, s3, 4")
        s("s_cmp_lt_u32 s52, 2\ns_cbranch_scc1 L_comm2")
        s("s_waitcnt lgkmcnt(0)")
        s.tags()
        s.signal(F_XN)
        s("s_cmp_lg_u32 s3, 6\ns_cbranch_scc1 L_hello_skip")
        s("s_getreg_b32 s6, hwreg(HW_REG_XCC_ID, 0, 4)\ns_and_b32 s64, s34, 0xfffffff0\ns_or_b32 s64, s64, s6")
        s(f"s_lshl_b32 s57, s4, 7\ns_add_u32 s57, s57, {HELLO}\ns_lshl_b32 s6, s5, 2\nv_mov_b32 v10, s6\nv_mov_b32 v11, s64\nv_mov_b32 v13, 1")
        s("v_and_b32 v12, 31, v1\nv_lshlrev_b32 v12, 2, v12")
        s("s_mov_b64 exec, 1\nbuffer_store_dword v11, v10, s[36:39], s57 offen\ns_mov_b64 exec, -1")
        s.spin(F_PROG, s.hstart, sleep=1)
        s("s_mov_b32 s7, 8\nL_hello:")
        s(f"buffer_load_dword v20, v12, s[36:39], s57 offen sc1\ns_waitcnt vmcnt(0)\nv_cmp_ne_u32 vcc, s64, v20\ns_cbranch_vccz L_hello_ok")
        s("s_sub_u32 s7, s7, 1\ns_cmp_lg_u32 s7, 0\ns_cbranch_scc1 L_hello")
        s("v_mov_b32 v13, 2")
        s("L_hello_ok:")
        if not s.fast: s("v_mov_b32 v13, 2")
        s(f"ds_write_b32 v5, v13 offset:{F_MODE}")
        s.stamp(3)
        if s.dbg: s("v_readfirstlane_b32 s80, v13")
        s("L_hello_skip:")
        s(f"s_mov_b64 s[56:57], s[16:17]\ns_mov_b32 s58, {4096*896}\ns_mov_b32 s59, 0x20000")
        s("s_call_b64 s[44:45], L_setup")
        s("s_cmp_lg_u32 s3, 7\ns_cbranch_scc1 L_tail\ns_cmp_eq_u32 s43, 0\ns_cbranch_scc1 L_fin")
        s("v_lshrrev_b32 v24, 3, v1\nv_and_b32 v25, 7, v1\nv_and_b32 v26, 6, v24\nv_xor_b32 v25, v25, v26\nv_mul_u32_u24 v24, 896, v24\nv_lshl_add_u32 v24, v25, 4, v24")
        s(f"s_mul_i32 s60, s4, {512*896}\ns_lshl_b32 s6, s5, 7\ns_add_u32 s60, s60, s6\ns_add_u32 s60, s60, {256*896}\ns_mov_b32 m0, {L_WT + 32768}\ns_mov_b32 s61, 0\ns_mov_b32 s62, 4\ns_movk_i32 s63, {s.trigwo}")
        s("s_cmp_eq_u32 s43, 1\ns_cbranch_scc1 L_l2go")
        s(f"s_mov_b64 s[56:57], s[24:25]\ns_mov_b32 s58, {1792*896}\ns_mul_i32 s60, s40, 57344\ns_mov_b32 m0, {L_V}\ns_mov_b32 s61, {57344-128}\ns_mov_b32 s62, 7\ns_movk_i32 s63, {s.trigw2}")
        s.spin(F_PROG, hex(130), sleep=2)
        s.spin(F_VR, 4, sleep=s.sl)
        s("L_l2go:")
        s.spin(F_MODE, 1, sleep=1)
        s("v_readfirstlane_b32 s42, v7")
        s.spin(F_KR, 4, sleep=2)
        s.spin(F_PROG, "s63", sleep=s.sl)
        s.stamp(4)
        s("L_l2l:")
        s(f"s_waitcnt vmcnt({s.W2 - 8})")
        for u in range(8):
            s(f"buffer_load_dwordx4 v24, s[56:59], s60 offen {s.polw} lds\ns_add_u32 m0, m0, 1024\ns_addk_i32 s60, 7168")
        s("s_sub_u32 s60, s60, s61\ns_sub_u32 s62, s62, 1\ns_cmp_lg_u32 s62, 0\ns_cbranch_scc1 L_l2l")
        s("s_cmp_eq_u32 s43, 1\ns_cbranch_scc1 L_l2wo")
        s("s_waitcnt vmcnt(0)")
        s.signal(F_W2)
        s.stamp(5)
        s("s_branch L_final")
        s("L_l2wo:")
        s(f"s_waitcnt vmcnt({s.wo7})")
        s.stamp(11)
        s("buffer_load_dwordx4 v[32:35], v8, s[36:39], s10 offen sc1\nbuffer_load_dwordx4 v[36:39], v8, s[36:39], s10 offen offset:128 sc1")
        s(f"s_mov_b32 s7, {BIG}\ns_waitcnt vmcnt(2)")
        s.signal(F_W2)
        s.stamp(5)
        s("s_branch L_wo_chk")
        s("L_comm2:")
        s("s_waitcnt lgkmcnt(0)")
        s.tags()
        s("s_call_b64 s[44:45], L_setup")
        s("s_lshr_b32 s56, s55, 3\ns_lshl_b32 s56, s56, 14\ns_lshl_b32 s6, s4, 11\ns_add_u32 s56, s56, s6\ns_lshl_b32 s6, s52, 10\ns_add_u32 s56, s56, s6")
        s(f"s_add_u32 s56, s56, {QP}\ns_add_u32 s57, s56, 0x10000\ns_add_u32 s58, s56, 0x20000\ns_add_u32 s59, s56, 0x30000")
        s("v_lshlrev_b32 v48, 4, v1")
        s(f"s_lshl_b32 s6, s52, 9\ns_add_u32 s6, s6, {L_Q}\nv_lshl_add_u32 v49, v1, 3, s6")
        if s.qstart: s.spin(F_PROG, s.qstart, sleep=1)
        s.stamp(3)
        ql = lambda b: "\n".join(f"buffer_load_dwordx4 v[{b+4*i}:{b+3+4*i}], v48, s[36:39], s{56+i} offen sc1" for i in range(4))
        s.ppoll(ql, 16, 4, s.qdepth, s.sgap, 24, cnt=8)
        s.stamp(4)
        s("v_pk_add_f32 v[32:33], v[32:33], v[36:37]\nv_pk_add_f32 v[34:35], v[34:35], v[38:39]\nv_pk_add_f32 v[40:41], v[40:41], v[44:45]\nv_pk_add_f32 v[42:43], v[42:43], v[46:47]")
        s("v_pk_add_f32 v[32:33], v[32:33], v[40:41]\nv_pk_add_f32 v[34:35], v[34:35], v[42:43]")
        s("v_cvt_pk_bf16_f32 v32, v32, v33\nv_cvt_pk_bf16_f32 v33, v34, v35\nds_write_b64 v49, v[32:33]")
        s.signal(F_Q)
        s(f"s_lshl_b32 s56, s55, 13\ns_lshl_b32 s6, s52, 12\ns_add_u32 s56, s56, s6\ns_add_u32 s56, s56, {SC}")
        s("s_lshl_b32 s6, s66, 11\ns_add_u32 s57, s56, s6\ns_xor_b32 s6, s6, 2048\ns_add_u32 s58, s56, s6")
        s("v_lshrrev_b32 v49, 3, v1\nv_lshlrev_b32 v49, 6, v49\nv_and_b32 v50, 3, v1\nv_lshl_add_u32 v49, v50, 4, v49\nv_bfe_u32 v50, v1, 2, 1\nv_lshl_add_u32 v49, v50, 3, v49")
        s(f"s_lshl_b32 s6, s52, 10\ns_add_u32 s6, s6, {L_P}\nv_add_u32 v49, s6, v49")
        c = 0.0625 * math.log2(math.e)
        s(f"s_mov_b32 s60, {hex(f2u(c))}\ns_mov_b32 s61, s60")
        s.spin(F_SP, 4, sleep=1)
        if s.sstart: s.spin(F_PROG, hex(s.sstart), sleep=1)
        s.stamp(5)
        sl = lambda b: "\n".join(f"buffer_load_dwordx4 v[{b+4*j}:{b+3+4*j}], v48, s[36:39], s{57 + (j >> 1)} offen offset:{(j & 1)*1024} sc1" for j in range(4))
        s.ppoll(sl, 16, 4, s.sdepth, s.sgap, 24, cnt=9)
        s.stamp(6)
        s("v_max3_f32 v24, v32, v33, v34\nv_max3_f32 v25, v35, v36, v37\nv_max3_f32 v26, v38, v39, v40\nv_max3_f32 v27, v41, v42, v43\nv_max3_f32 v28, v44, v45, v46")
        s("v_max3_f32 v24, v24, v25, v47\nv_max3_f32 v26, v26, v27, v28\nv_max_f32 v24, v24, v26")
        s.reduce2(24, None, "max")
        s("v_readlane_b32 s62, v24, 63\ns_mov_b32 s63, s62")
        for i in range(8): s(f"v_pk_add_f32 v[{32+2*i}:{33+2*i}], v[{32+2*i}:{33+2*i}], s[62:63] neg_lo:[0,1] neg_hi:[0,1]")
        for i in range(8): s(f"v_pk_mul_f32 v[{32+2*i}:{33+2*i}], v[{32+2*i}:{33+2*i}], s[60:61]")
        for i in range(16): s(f"v_exp_f32 v{32+i}, v{32+i}")
        s("v_pk_add_f32 v[24:25], v[32:33], v[34:35]\nv_pk_add_f32 v[26:27], v[36:37], v[38:39]\nv_pk_add_f32 v[28:29], v[40:41], v[42:43]\nv_pk_add_f32 v[30:31], v[44:45], v[46:47]")
        s("v_pk_add_f32 v[24:25], v[24:25], v[26:27]\nv_pk_add_f32 v[28:29], v[28:29], v[30:31]\nv_pk_add_f32 v[24:25], v[24:25], v[28:29]\nv_add_f32 v24, v24, v25")
        s.reduce2(24, None, "add")
        s("v_readlane_b32 s62, v24, 63\nv_rcp_f32 v24, s62")
        for i in range(4): s(f"v_pk_mul_f32 v[{32+2*i}:{33+2*i}], v[{32+2*i}:{33+2*i}], v[24:25] op_sel_hi:[1,0]")
        for i in range(4): s(f"v_cvt_pk_bf16_f32 v{26+i}, v{32+2*i}, v{33+2*i}")
        s("ds_write_b64 v49, v[26:27]\nds_write_b64 v49, v[28:29] offset:512")
        s.signal(F_P)
        s.stamp(7)
        s("s_waitcnt vmcnt(0)")
        s("L_tail:")
        s.spin(F_MODE, 1, sleep=1)
        s("v_readfirstlane_b32 s42, v7")
        s("L_tail2:")
        s("s_cmp_eq_u32 s43, 1\ns_cbranch_scc1 L_wo")
        s("s_cmp_eq_u32 s43, 0\ns_cbranch_scc1 L_fin")
        s("s_cmp_eq_u32 s43, 3\ns_cbranch_scc1 L_final")
        W1R, W2R, BT = 64, 120, 152
        w1rd = "\n".join(f"ds_read_b64_tr_b16 v[{W1R+4*m+2*hf}:{W1R+4*m+2*hf+1}], v14 offset:{m*4096 + hf*2048}" for m in range(14) for hf in range(2))
        w2rd = "\n".join(f"ds_read_b64_tr_b16 v[{W2R+(t*2+m)*4+2*hf}:{W2R+(t*2+m)*4+2*hf+1}], v{15+t} offset:{m*4096 + hf*2048}" for t in range(4) for m in range(2) for hf in range(2))
        c0 = -2.0*math.sqrt(2.0/math.pi)*math.log2(math.e)
        if s.fuseln: s(f"v_mul_f32 v23, {hex(f2u(1.0/448))}, v23")
        s(f"v_mov_b32 v30, {hex(f2u((1.0+1e-5)/448 if s.fuseln == 1 else 1.0/448))}\nv_mov_b32 v31, 0xffff0000\nv_mov_b32 v29, {hex(f2u(c0*0.044715))}\ns_mov_b32 s60, 0x3f803f80")
        s("v_mov_b32 v53, 0\nv_mov_b32 v56, 0")
        s.spin(F_PROG, hex(146), sleep=2)
        s(f"global_load_ushort v11, v11, s[22:23]\nds_read_u16 v10, v10 offset:{L_X}")
        if s.pretouch >= 2: s("buffer_load_dword v0, v20, s[36:39], s12 offen")
        if s.pretouch == 2: s("s_cmp_lg_u32 s3, s4\ns_cbranch_scc1 L_m_npt\nbuffer_load_dword v0, v20, s[36:39], s13 offen sc1\nL_m_npt:")
        cs = ""
        if s.fuseln == 2:
            s(f"s_mov_b32 s61, {hex(f2u(1e-5))}")
            cs = "\n" + "\n".join(f"v_mov_b32 v{44+i}, s60" for i in range(4)) + "\ns_waitcnt lgkmcnt(0)\n"
            cs += "\n".join(f"v_mfma_f32_16x16x32_bf16 v[40:43], v[{W1R+4*m}:{W1R+4*m+3}], v[44:47], " + ("0" if m == 0 else "v[40:43]") for m in range(14))
            cs += "\nv_cndmask_b32 v40, v40, v41, s[14:15]\nv_cndmask_b32 v42, v42, v43, s[14:15]\nv_cndmask_b32 v28, v40, v42, s[16:17]"
        if not s.w1in: s.must_reads(0, 212, w1rd + cs, 24, sleep=2)
        s.spin(F_PROG, hex(212), sleep=s.sl)
        if s.hpw2: s.spin(F_W2, 1, sleep=1)
        s("s_waitcnt vmcnt(0)")
        s("v_lshlrev_b32 v10, 16, v10\nv_lshlrev_b32 v11, 16, v11")
        s.stamp(11)
        loads = "buffer_load_dwordx4 v[32:35], v12, s[36:39], s10 offen sc1\nbuffer_load_dwordx4 v[36:39], v13, s[36:39], s11 offen sc1"
        if s.hdepth > 1:
            hl2 = lambda b: f"buffer_load_dwordx4 v[{b}:{b+3}], v12, s[36:39], s10 offen sc1\nbuffer_load_dwordx4 v[{b+4}:{b+7}], v13, s[36:39], s11 offen sc1"
            s.ppoll(hl2, 8, 2, s.hdepth, s.hgap, 24, base0=[52, 152, 160], mid=lambda: s.try_reads(1, 1, w2rd, 24, flag=F_W2))
        else:
            def mid():
                if s.w1in:
                    s("s_bitcmp1_b32 s35, 0\ns_cbranch_scc1 L_w1done")
                    s(w1rd + cs)
                    s("s_bitset1_b32 s35, 0\nL_w1done:")
                s.try_reads(1, 1, w2rd, 24, flag=F_W2)
            s.poll(loads, list(range(32, 40)), 24, mid=mid)
        s.stamp(12)
        s("v_pk_add_f32 v[32:33], v[32:33], v[36:37]\nv_pk_add_f32 v[34:35], v[34:35], v[38:39]")
        s("v_permlane32_swap_b32 v32, v33\nv_permlane32_swap_b32 v34, v35")
        s("v_add_f32 v32, v32, v33\nv_add_f32 v34, v34, v35")
        s("v_permlane16_swap_b32 v32, v34")
        s("v_add_f32 v32, v32, v34")
        s.rnd(32)
        s("v_add_f32 v32, v10, v32\nv_cvt_pk_bf16_f32 v32, v32, v32")
        s(f"ds_write_b16 v8, v32 offset:{L_H}")
        s.signal(F_H)
        s("s_cmp_lt_u32 s3, 4\ns_cbranch_scc1 L_m_ln")
        s("s_call_b64 s[44:45], L_fsetup")
        s("s_or_b32 s6, s40, s41\ns_xor_b32 s7, s3, 4\ns_or_b32 s6, s6, s7\ns_cbranch_scc1 L_m_bar2")
        s("v_mov_b32 v33, s34\ns_mov_b64 exec, 1\nbuffer_store_dword v33, v5, s[36:39], 0 offen sc1\ns_mov_b64 exec, -1\ns_branch L_m_bar2\nL_m_ln:")
        s.spin(F_H, 7, f"ds_read_b128 v[24:27], v19 offset:{L_H}")
        s.stamp(1)
        def bc(m):
            r = BT + 4*(m % 4)
            s(f"v_mov_b64_dpp v[{r}:{r+1}], v[24:25] row_newbcast:{m} row_mask:0xf bank_mask:0xf\nv_mov_b64_dpp v[{r+2}:{r+3}], v[26:27] row_newbcast:{m} row_mask:0xf bank_mask:0xf")
        DPPS = ("row_shr:1 row_mask:0xf", "row_shr:2 row_mask:0xf", "row_shr:4 row_mask:0xf", "row_shr:8 row_mask:0xf", "row_bcast:15 row_mask:0xa", "row_bcast:31 row_mask:0xc")
        unp = lambda i: (f"v_lshlrev_b32 v{32+i}, 16, v{24+i//2}" if i % 2 == 0 else f"v_and_b32 v{32+i}, v31, v{24+i//2}")
        if s.fuseln:
            for i in range(4): s(f"v_dot2_f32_bf16 v48, v{24+i}, s60, " + ("0" if i == 0 else "v48"))
            s(unp(0)); s(unp(1)); s(unp(2))
            k = 3
            for m in DPPS:
                s(f"v_add_f32_dpp v48, v48, v48 {m} bank_mask:0xf")
                for _ in range(2):
                    if k < 8: s(unp(k)); k += 1
            s("v_readlane_b32 s62, v48, 63\nv_mul_f32 v48, s62, v23")
            for i in range(4): s(f"v_pk_add_f32 v[{40+2*i}:{41+2*i}], v[{32+2*i}:{33+2*i}], v[48:49] op_sel_hi:[1,0] neg_lo:[0,1] neg_hi:[0,1]")
            for i in range(4): s(f"v_cvt_pk_bf16_f32 v{24+i}, v{40+2*i}, v{41+2*i}")
            s.stamp(2)
            if s.fuseln == 1:
                side = [f"v_dot2_f32_bf16 v49, v24, v24, 0\nv_dot2_f32_bf16 v49, v25, v25, v49", f"v_dot2_f32_bf16 v49, v26, v26, v49\nv_dot2_f32_bf16 v49, v27, v27, v49"]
                side += [f"v_add_f32_dpp v49, v49, v49 {m} bank_mask:0xf" for m in DPPS]
                side += ["v_readlane_b32 s63, v49, 63", f"v_mov_b32 v50, {hex(f2u(1e-10))}", "v_fma_f32 v49, s63, v30, v50", "v_rsq_f32 v49, v49"]
            else:
                dd = lambda i: f"v_dot2_f32_bf16 v48, v{24+i}, s60, " + ("0" if i == 0 else "v48") + f"\nv_dot2_f32_bf16 v49, v{24+i}, v{24+i}, " + ("0" if i == 0 else "v49")
                side = [dd(0), dd(1), dd(2), dd(3)]
                side += [f"v_add_f32_dpp v48, v48, v48 {m} bank_mask:0xf\nv_add_f32_dpp v49, v49, v49 {m} bank_mask:0xf" for m in DPPS]
                side += ["v_readlane_b32 s62, v48, 63\nv_readlane_b32 s63, v49, 63",
                         "v_mul_f32 v48, s62, v30\nv_mul_f32 v49, s63, v30",
                         "v_fma_f32 v49, -v48, v48, v49\nv_add_f32 v50, s61, v49",
                         "v_rsq_f32 v50, v50\nv_mul_f32 v48, v48, v28\nv_mul_f32 v51, v50, v50\nv_fma_f32 v51, v51, v49, s61\nv_rsq_f32 v51, v51\nv_mul_f32 v49, v50, v51\nv_fma_f32 v11, -v49, v48, v11"]
        else:
            s.ln_fast(24, 32, 40, 30, unp, lanemask=23)
            s.ln_fast(24, 32, 40, 30, lambda i: f"v_cvt_pk_bf16_f32 v{32+i}, 0, v{40+i}")
            s.stamp(2)
            side = []
        if s.hdepth > 1: s("s_waitcnt vmcnt(0)")
        bc(0); bc(1)
        for m in range(14):
            c = "0" if m == 0 else "v[32:35]"
            r = BT + 4*(m % 4)
            s(f"v_mfma_f32_16x16x32_bf16 v[32:35], v[{W1R+4*m}:{W1R+4*m+3}], v[{r}:{r+3}], {c}")
            if m + 2 < 14: bc(m + 2)
            if m < len(side): s(side[m])
        s("v_cndmask_b32 v32, v32, v33, s[14:15]\nv_cndmask_b32 v34, v34, v35, s[14:15]\nv_cndmask_b32 v32, v32, v34, s[16:17]")
        if s.fuseln:
            s("v_fma_f32 v32, v32, v49, v11")
        else:
            s.rnd(32)
            s("v_add_f32 v32, v11, v32")
            s.rnd(32)
        s(f"v_mul_f32 v33, v32, v32\nv_fmaak_f32 v33, v29, v33, {hex(f2u(c0))}\nv_mul_f32 v33, v32, v33\nv_exp_f32 v33, v33\nv_add_f32 v33, 1.0, v33\nv_rcp_f32 v33, v33\nv_mul_f32 v32, v32, v33")
        s("v_cvt_pk_bf16_f32 v32, v32, v32")
        s(f"ds_write_b16 v9, v32 offset:{L_HH}")
        s.stamp(3)
        s("L_m_bar2:")
        s.must_reads(1, 1, w2rd, 7, flag=F_W2)
        s("s_waitcnt lgkmcnt(0)\ns_barrier")
        s(f"ds_read_b128 v[24:27], v22 offset:{L_HH}\nds_read_b128 v[48:51], v22 offset:{L_HH+64}")
        mf = lambda t, m: f"v_mfma_f32_16x16x32_bf16 v[{32+4*t}:{35+4*t}], v[{W2R+(t*2+m)*4}:{W2R+(t*2+m)*4+3}], " + ("v[24:27], 0" if m == 0 else f"v[48:51], v[{32+4*t}:{35+4*t}]")
        sel = lambda t: f"v_cndmask_b32 v{32+4*t}, v{32+4*t}, v{33+4*t}, s[14:15]\nv_cndmask_b32 v{34+4*t}, v{34+4*t}, v{35+4*t}, s[14:15]\nv_cndmask_b32 v{32+4*t}, v{32+4*t}, v{34+4*t}, s[16:17]"
        s("s_waitcnt lgkmcnt(1)")
        s(mf(0, 0)); s(mf(1, 0))
        s("s_waitcnt lgkmcnt(0)")
        s(mf(0, 1)); s(mf(1, 1)); s(mf(2, 0)); s(mf(3, 0)); s(mf(2, 1)); s(mf(3, 1))
        s(sel(0)); s(sel(1)); s("v_cndmask_b32 v32, v32, v36, s[18:19]")
        s(sel(2)); s(sel(3)); s("v_cndmask_b32 v40, v40, v44, s[18:19]\nv_cndmask_b32 v32, v32, v40, s[20:21]")
        s("v_bfi_b32 v32, v4, v21, v32")
        s("buffer_store_dword v32, v20, s[36:39], s12 offen sc1")
        s("s_cmp_lg_u32 s3, s4\ns_cbranch_scc1 L_m_pubd")
        s.publish(None, "buffer_store_dword v32, v20, s[36:39], s13 offen")
        s("L_m_pubd:")
        s.stamp(13)
        s("s_barrier")
        s("s_cmp_lt_u32 s3, 4\ns_cbranch_scc1 L_fin\ns_branch L_fin_go")
        s("L_fsetup:")
        s("v_and_b32 v52, 1, v3\nv_lshlrev_b32 v52, 1, v52\nv_lshrrev_b32 v53, 1, v3\nv_add_u32 v52, v52, v53")
        s("s_min_u32 s58, s40, 6\ns_and_b32 s59, s3, 3")
        s("v_and_b32 v53, 3, v2\nv_lshl_add_u32 v53, v53, 4, v52\ns_lshl_b32 s6, s58, 6\nv_add_u32 v53, s6, v53\ns_lshl_b32 s6, s59, 2\nv_add_u32 v53, s6, v53")
        s.perm_pos(54, 53, 52)
        s("v_lshlrev_b32 v53, 1, v53")
        s("global_load_ushort v55, v53, s[26:27]")
        s("v_lshrrev_b32 v56, 2, v1\nv_mul_u32_u24 v56, 7168, v56\nv_and_b32 v52, 3, v1\nv_lshl_add_u32 v56, v52, 4, v56")
        s(f"s_mul_i32 s56, s41, 1792\ns_lshl_b32 s6, s58, 8\ns_add_u32 s56, s56, s6\ns_lshl_b32 s6, s59, 6\ns_add_u32 s56, s56, s6\ns_add_u32 s56, s56, {O5}\ns_add_u32 s57, s56, {16*7168}")
        s("s_mul_i32 s6, s41, 896\nv_add_u32 v53, s6, v53")
        if s.outpt is not None:
            s(f"s_cmp_ge_u32 s40, 7\ns_cbranch_scc1 L_nopt\nglobal_load_ushort v0, v53, s[28:29] {s.outpt}\nL_nopt:")
        s(f"v_bfe_u32 v52, v1, 2, 3\nv_cmp_eq_u32 vcc, s4, v52\nv_add_u32 v52, {O5S}, v56\nv_cndmask_b32 v56, v56, v52, vcc")
        for k in range(s.R5):
            for q in range(4): s(f"v_mov_b32 v{64+8*k+4+q}, s{48+q}")
        s("s_nop 4\ns_setpc_b64 s[44:45]")
        s("L_final:")
        s("s_call_b64 s[44:45], L_fsetup")
        s("s_barrier\ns_barrier")
        s("L_fin_go:")
        s("s_cmp_ge_u32 s40, 7\ns_cbranch_scc1 L_fin")
        s(f"ds_read_u16 v54, v54 offset:{L_H}")
        if s.findelay: s(f"s_sleep {s.findelay}")
        s.stamp(11)
        fl = lambda b: f"buffer_load_dwordx4 v[{b}:{b+3}], v56, s[36:39], s56 offen sc1\ns_mov_b32 exec_hi, 0xffff\nbuffer_load_dwordx4 v[{b+4}:{b+7}], v56, s[36:39], s57 offen sc1\ns_mov_b32 exec_hi, -1"
        s.ppoll(fl, 8, 2, s.R5, s.fgap, 24, cnt=10)
        s.stamp(12)
        s("v_pk_add_f32 v[32:33], v[32:33], v[36:37]\nv_pk_add_f32 v[34:35], v[34:35], v[38:39]")
        s("s_waitcnt lgkmcnt(0)")
        s("v_permlane32_swap_b32 v32, v33\nv_permlane32_swap_b32 v34, v35")
        s("v_add_f32 v32, v32, v33\nv_add_f32 v34, v34, v35")
        s("v_lshlrev_b32 v54, 16, v54\nv_lshlrev_b32 v55, 16, v55")
        s("v_permlane16_swap_b32 v32, v34")
        s("v_add_f32 v32, v32, v34")
        s("v_add_f32_dpp v32, v32, v32 row_ror:8 row_mask:0xf bank_mask:0xf")
        s("v_add_f32_dpp v32, v32, v32 row_ror:4 row_mask:0xf bank_mask:0xf")
        s.exec_mask(N4)
        s.rnd(32)
        s("v_add_f32 v32, v55, v32")
        s.rnd(32)
        s("v_add_f32 v32, v54, v32")
        if s.perturb: s(f"v_add_f32 v32, {hex(f2u(s.perturb))}, v32")
        s("v_cvt_pk_bf16_f32 v32, v32, v32")
        s(f"global_store_short v53, v32, s[28:29] {s.outpol}")
        s.exec_all()
        s.stamp(9)
        s("s_branch L_fin")
        s("L_setup:")
        s("s_nop 1")
        s("s_cmp_ge_u32 s3, 4\ns_cselect_b32 s35, 1, 0")
        s("v_and_b32 v23, 3, v2\nv_lshlrev_b32 v21, 3, v23\nv_lshrrev_b32 v21, v21, s34")
        s("v_and_b32 v22, 1, v2\nv_cmp_ne_u32 s[14:15], 0, v22\nv_cmp_lt_u32 s[16:17], 1, v23")
        s(f"s_lshl_b32 s6, s3, 13\ns_add_u32 s6, s6, {L_V}")
        s.tr_addr4(15, "s6", 14, 22)
        s(f"s_lshl_b32 s6, s3, 5\nv_xor_b32 v14, s6, v14\nv_add_u32 v14, {L_WT}, v14")
        s("s_mov_b32 s43, 1\ns_cmp_lt_u32 s5, 7\ns_cbranch_scc1 L_set_wo")
        s("s_mov_b32 s43, 0")
        s.mlp_ids("L_set_ret", 40, 41)
        s("s_mov_b32 s43, 3\ns_cmp_eq_u32 s3, 7\ns_cbranch_scc1 L_set_ret\ns_mov_b32 s43, 2")
        s("v_and_b32 v19, 1, v3\nv_lshlrev_b32 v19, 1, v19\nv_lshrrev_b32 v20, 1, v3\nv_add_u32 v19, v19, v20")
        s("v_lshl_add_u32 v19, v2, 2, v19\ns_lshl_b32 s6, s3, 6\nv_add_u32 v19, s6, v19")
        s("s_mul_i32 s6, s41, 896\nv_lshl_add_u32 v20, v19, 1, s6")
        s("v_mov_b32 v10, v20")
        s.perm_pos(8, 19, 20)
        s("s_and_b32 s6, s3, 3\ns_lshl_b32 s6, s6, 4\nv_lshl_add_u32 v19, v3, 2, v23\nv_add_u32 v19, s6, v19")
        s("s_lshl_b32 s6, s40, 7\nv_lshl_add_u32 v20, v19, 1, s6")
        s("v_mov_b32 v11, v20")
        s.perm_pos(9, 19, 20)
        s("v_mul_u32_u24 v12, 7168, v3\nv_lshl_add_u32 v12, v2, 4, v12\nv_mov_b32 v13, v12")
        s(f"v_add_u32 v19, {HPL}, v12\nv_cmp_eq_u32 vcc, s4, v3\nv_add_u32 v20, 4, v3\nv_cndmask_b32 v12, v12, v19, vcc\nv_cmp_eq_u32 vcc, s4, v20\nv_cndmask_b32 v13, v13, v19, vcc")
        s(f"s_mul_i32 s10, s41, 1792\ns_lshl_b32 s6, s3, 8\ns_add_u32 s10, s10, s6\ns_add_u32 s12, s10, {O5}\ns_add_u32 s10, s10, {HP}\ns_add_u32 s11, s10, 28672")
        s(f"s_mul_i32 s6, s40, 7168\ns_add_u32 s12, s12, s6\ns_add_u32 s13, s12, {O5S}")
        s("v_lshlrev_b32 v22, 4, v3\nv_lshl_add_u32 v19, v2, 6, v22")
        s("v_and_b32 v20, 4, v2\nv_cmp_ne_u32 s[18:19], 0, v20\nv_cmp_lt_u32 s[20:21], 7, v2\nv_cmp_gt_u32 vcc, 14, v2\nv_lshlrev_b32 v20, 2, v1\nv_cndmask_b32 v23, 0, 1.0, vcc")
        s("s_branch L_set_touch")
        s("L_set_wo:")
        s("v_lshrrev_b32 v8, 3, v1\nv_lshlrev_b32 v8, 14, v8\nv_and_b32 v19, 7, v1\nv_lshl_add_u32 v8, v19, 4, v8")
        s(f"s_lshl_b32 s10, s4, 11\ns_lshl_b32 s6, s3, 8\ns_add_u32 s10, s10, s6\ns_add_u32 s10, s10, {OP}")
        s(f"s_lshl_b32 s6, s3, 9\nv_and_b32 v9, 31, v1\nv_lshlrev_b32 v9, 4, v9\nv_lshrrev_b32 v19, 5, v1\nv_lshl_add_u32 v9, v19, 3, v9\nv_add_u32 v9, s6, v9")
        s("v_lshrrev_b32 v19, 2, v2\nv_lshlrev_b32 v10, 7, v19\nv_lshl_add_u32 v10, v3, 4, v10")
        s("v_mul_u32_u24 v20, 1792, v19\nv_lshl_add_u32 v20, v3, 4, v20\nv_lshl_add_u32 v20, v23, 2, v20")
        s(f"s_mul_i32 s12, s4, 7168\ns_lshl_b32 s6, s5, 8\ns_add_u32 s12, s12, s6\ns_and_b32 s6, s3, 3\ns_lshl_b32 s6, s6, 6\ns_add_u32 s12, s12, s6\ns_add_u32 s12, s12, {HP}\ns_add_u32 s13, s12, {HPL}")
        s("s_cmp_ge_u32 s3, 4\ns_cbranch_scc1 L_set_ret")
        s("L_set_touch:")
        if s.pretouch == 1:
            s("buffer_load_dword v0, v20, s[36:39], s12 offen\nbuffer_load_dword v0, v20, s[36:39], s13 offen sc1")
        if s.pretouch == 3:
            s("v_xor_b32 v7, v4, v21\nbuffer_store_dword v7, v20, s[36:39], s13 offen")
        s("L_set_ret:")
        s("s_nop 4\ns_setpc_b64 s[44:45]")
        s("L_wo:")
        AR, BR = 40, 104
        wordh = lambda st: "\n".join(f"ds_read_b64_tr_b16 v[{AR+(2*w+st)*4+2*hf}:{AR+(2*w+st)*4+2*hf+1}], v14 offset:{st*32768 + w*4096 + hf*2048}" for w in range(8) for hf in range(2))
        if s.pretouch >= 2:
            s("s_cmp_ge_u32 s3, 4\ns_cbranch_scc1 L_wo_nt\nbuffer_load_dword v0, v20, s[36:39], s12 offen")
            if s.pretouch == 2: s("buffer_load_dword v0, v20, s[36:39], s13 offen sc1")
            s("L_wo_nt:")
        assert s.wostart == 178
        s.spin(F_PROG, hex(s.wostart - 16), sleep=2)
        s.spin(F_PROG, hex(s.wostart), sleep=s.sl)
        s("s_cmp_ge_u32 s3, 4\ns_cbranch_scc1 L_wo_p")
        s(wordh(0))
        s("L_wo_p:")
        s.stamp(11)
        loads = "buffer_load_dwordx4 v[32:35], v8, s[36:39], s10 offen sc1\nbuffer_load_dwordx4 v[36:39], v8, s[36:39], s10 offen offset:128 sc1"
        s.poll(loads, list(range(32, 40)), 24, mid=lambda: s.try_reads(0, 1, wordh(1), 24, flag=F_W2), chk="L_wo_chk")
        s.stamp(12)
        for i in range(4): s(f"v_permlane32_swap_b32 v{32+i}, v{36+i}")
        s("v_pk_add_f32 v[32:33], v[32:33], v[36:37]\nv_pk_add_f32 v[34:35], v[34:35], v[38:39]")
        s("v_cvt_pk_bf16_f32 v32, v32, v33\nv_cvt_pk_bf16_f32 v33, v34, v35")
        s(f"ds_write_b64 v9, v[32:33] offset:{L_WQ}")
        s.must_reads(0, 1, wordh(1), 24, flag=F_W2)
        s("s_waitcnt lgkmcnt(0)")
        s.stamp(2)
        s("s_barrier")
        s.stamp(3)
        s("s_cmp_ge_u32 s3, 4\ns_cbranch_scc1 L_fin")
        s.sched([f"ds_read_b128 v[{BR+4*q}:{BR+4*q+3}], v10 offset:{L_WQ + (q>>1)*512 + (q&1)*64}" for q in range(16)],
                [(f"v_mfma_f32_16x16x32_bf16 v[32:35], v[{AR+4*q}:{AR+4*q+3}], v[{BR+4*q}:{BR+4*q+3}], " + ("0" if q == 0 else "v[32:35]"), q) for q in range(16)])
        s("v_cndmask_b32 v32, v32, v33, s[14:15]\nv_cndmask_b32 v34, v34, v35, s[14:15]\nv_cndmask_b32 v32, v32, v34, s[16:17]")
        s("v_bfi_b32 v32, v4, v21, v32")
        s.publish2(32, 20)
        s.stamp(13)
        s("L_fin:")
        if s.probe:
            pi, lo, hi, A, role = s.probe
            def until(lbl, sreg):
                s(f"{lbl}:\ns_sleep {2 if lbl == 'L_pr5' else 40}\ns_memrealtime s[60:61]\ns_waitcnt lgkmcnt(0)\ns_sub_u32 s60, s60, s{sreg}\ns_cmp_lt_i32 s60, 0\ns_cbranch_scc1 {lbl}")
            s("s_cmp_gt_u32 s3, 7\ns_cbranch_scc1 L_end\ns_waitcnt lgkmcnt(0)\ns_add_u32 s100, s72, 1800")
            until("L_pr1", 100)
            s("s_mov_b64 exec, 1")
            s("s_cmp_lg_u32 s3, 0\ns_cbranch_scc1 L_pr2\ns_not_b32 s6, s72\nv_mov_b32 v32, s6\nglobal_atomic_umax v5, v32, s[30:31] offset:128\nL_pr2:")
            s(f"s_cmp_lt_u32 s3, {lo}\ns_cbranch_scc1 L_pr3\ns_cmp_gt_u32 s3, {hi}\ns_cbranch_scc1 L_pr3")
            if role is not None: s(f"s_cmp_lg_u32 s43, {role}\ns_cbranch_scc1 L_pr3")
            s(f"v_mov_b32 v33, s{72+2*pi}\nglobal_atomic_umax v5, v33, s[30:31]\nL_pr3:")
            s("s_cmp_lg_u32 s2, 64\ns_cbranch_scc1 L_end\ns_cmp_lg_u32 s3, 7\ns_cbranch_scc1 L_end\ns_add_u32 s100, s72, 5000")
            until("L_pr4", 100)
            s("global_load_dword v32, v5, s[30:31] sc1\nglobal_load_dword v33, v5, s[30:31] offset:128 sc1\ns_waitcnt vmcnt(0)\nv_readfirstlane_b32 s6, v32\nv_readfirstlane_b32 s7, v33")
            s(f"s_not_b32 s7, s7\ns_sub_u32 s6, s6, s7\ns_min_u32 s6, s6, 3000\ns_mul_i32 s6, s6, {A}\ns_add_u32 s100, s7, 6000\ns_add_u32 s100, s100, s6")
            until("L_pr5", 100)
        if s.pad:
            if s.padsel >= 0: s(f"s_getreg_b32 s6, hwreg(HW_REG_XCC_ID, 0, 4)\ns_cmp_lg_u32 s6, {s.padsel}\ns_cbranch_scc1 L_end")
            s(f"s_add_u32 s100, s100, {s.pad}\nL_pad:\ns_memrealtime s[98:99]\ns_waitcnt lgkmcnt(0)\ns_sub_u32 s98, s98, s100\ns_cmp_lt_i32 s98, 0\ns_cbranch_scc1 L_pad")
        if s.dbg:
            s.stamp(14)
            s("s_cmp_gt_u32 s3, 7\ns_cbranch_scc1 L_nosl\ns_sleep 100\nL_nosl:")
            s("s_waitcnt lgkmcnt(0)")
            s("s_getreg_b32 s6, hwreg(HW_REG_XCC_ID)")
            for i in range(15): s(f"v_mov_b32 v{32+i}, s{72+2*i}")
            s("v_mov_b32 v47, s6")
            s(f"s_min_u32 s3, s3, 8\ns_mul_i32 s6, s2, 9\ns_add_u32 s6, s6, s3\ns_lshl_b32 s6, s6, 6\ns_add_u32 s6, s6, {STAMP}")
            s("s_mov_b64 exec, 1")
            for i in range(4): s(f"buffer_store_dwordx4 v[{32+4*i}:{35+4*i}], v5, s[36:39], s6 offen offset:{16*i}")
        s("L_end:\ns_endpgm")
        return s

    def text(s):
        body = hazard.fix(s.L)
        hdr = open("header.txt").read()
        out = hdr + f"; @launch grid=(256,1,1) block=(576,1,1) lds={LDS_SIZE}\n"
        out += '.amdgcn_target "amdgcn-amd-amdhsa--gfx950"\n.text\n'
        out += f".globl {KNAME}\n.p2align 8\n.type {KNAME},@function\n{KNAME}:\n"
        for l in body:
            out += (l if l.endswith(":") else "    " + l) + "\n"
        out += f""".section .rodata,"a"
.p2align 6
.amdhsa_kernel {KNAME}
  .amdhsa_next_free_vgpr 168
  .amdhsa_next_free_sgpr 102
  .amdhsa_accum_offset 168
  .amdhsa_group_segment_fixed_size 0
  .amdhsa_kernarg_size 104
  .amdhsa_user_sgpr_count 2
  .amdhsa_user_sgpr_kernarg_segment_ptr 1
  .amdhsa_system_sgpr_workgroup_id_x 1
.end_amdhsa_kernel
"""
        return out

def make(path, **kw):
    open(path, "w").write(Gen(**kw).build().text())

if __name__ == "__main__":
    make(sys.argv[1] if len(sys.argv) > 1 else "k.s", dbg=("dbg" in sys.argv))
```
